```python
import torch

def _softmax(x, axis=-1):
    return torch.softmax(x, dim=axis)
def _gelu(x):
    return torch.nn.functional.gelu(x, approximate="tanh")
def _silu(x):
    return torch.nn.functional.silu(x)
def _sigmoid(x):
    return torch.sigmoid(x)
def _layernorm(x, axis=-1, eps=1e-5):
    m = x.mean(dim=axis, keepdim=True)
    v = x.var(dim=axis, keepdim=True, unbiased=False)
    return (x - m) / torch.sqrt(v + eps)
def _scatter_add(tgt, idx, src, axis=0):
    return tgt.clone().index_add_(axis, idx, src)
def _segment_sum(src, seg, n):
    out = torch.zeros((n,) + src.shape[1:], dtype=src.dtype)
    return out.index_add_(0, seg, src)
def _pad(x, pw):
    flat = tuple(v for pair in reversed(pw) for v in pair)
    return torch.nn.functional.pad(x, flat)

kernel_name = 'standalone__self_sup_conv_stem_hubert__speech'

def setup_inputs():

    _w = (lambda a: (lambda t: t.to(torch.bfloat16) if t.is_floating_point() else t)(torch.as_tensor(a)))
    B, T, D, K = 2, 4000, 512, 15
    scale = (1.0 / (K * D)) ** 0.5
    return {
        "x": _w((lambda *s: torch.randn(*s, dtype=torch.bfloat16) * 0.05)(B, T, D)),
        "w": _w((lambda *s: torch.randn(*s, dtype=torch.bfloat16) * 0.05)(K, D, D) * scale),
        "b": _w((lambda *s: torch.randn(*s, dtype=torch.bfloat16) * 0.05)(D) * 0.1),
        "gamma": _w(torch.ones((D,), dtype=float)),
        "beta": _w(torch.zeros((D,), dtype=float)),
    }

def reference(x, w, b, gamma, beta):
    B, T, D = x.shape
    K = w.shape[0]
    s = 2
    L = (T - K) // s + 1
    y = torch.einsum('blc,cd->bld', x[:, 0 : s * L : s, :], w[0])
    for i in range(1, K):
        y = y + torch.einsum('blc,cd->bld', x[:, i : i + s * L : s, :], w[i])
    y = y + b[None, None, :]
    mu = y.mean(1, keepdims=True)
    var = ((y - mu) ** 2).mean(1, keepdims=True)
    yn = (y - mu) / torch.sqrt(var + 1e-5)
    yn = yn * gamma[None, None, :] + beta[None, None, :]
    return _gelu(yn)
```

```python
import sys

NAME = "standalone__self_sup_conv_stem_hubert__speech"

X_BYTES = 2 * 4000 * 512 * 2
W_BYTES = 15 * 512 * 512 * 2
OUT_BYTES = 2 * 1993 * 512 * 2
WS_BYTES = 268435456
XBLK = 1040
XBUF = 34 * XBLK
WRING = 2 * XBUF
NSLOT = 10
LDS1 = WRING + 8 * NSLOT * 1024
STATS_WS = 0x800000


class Asm:
    def __init__(self):
        self.lines = []

    def __call__(self, s):
        self.lines.append("    " + s)

    def label(self, l):
        self.lines.append(l + ":")

    def c(self, s):
        self.lines.append("    ; " + s)

    def text(self):
        return "\n".join(self.lines) + "\n"


def vr(a, n=1):
    return f"v{a}" if n == 1 else f"v[{a}:{a+n-1}]"


def sr(a, n=1):
    return f"s{a}" if n == 1 else f"s[{a}:{a+n-1}]"


V_TID, V_LANE, V_T0, V_T1, V_T2, V_T3 = 0, 1, 2, 3, 4, 5
V_AADDR, V_BADDR, V_WOFF, V_XOFF, V_XOFF5, V_BIAS = 6, 7, 8, 9, 10, 11
V_T4, V_T5, V_T6, V_T7 = 12, 13, 14, 15
V_A = 16
V_B = 100
V_ACC = 112
NVGPR1 = 176

S_X, S_W, S_BI, S_WS = 4, 6, 8, 10
S_K, S_Q, S_B, S_NT, S_MT = 12, 13, 14, 15, 16
SRD_X, SRD_W, SRD_WS, SRD_BI = 20, 24, 28, 32
S_WAVE, S_KQ, S_NH, S_WRING, S_XM0, S_XM05 = 36, 37, 38, 39, 40, 41
S_ITW, S_ITX, S_IT, S_T0, S_T1, S_T2 = 42, 43, 44, 45, 46, 47
S_NVAL, S_CNT = 48, 49
S_MASK = 52


def afrag(par, g):
    return V_A + 4 * (g if par == 0 else 11 + g)


def tap_of(sig):
    return 2 * sig if sig < 8 else 2 * (sig - 8) + 1


def decode_wg(a):
    a(f"s_and_b32 s{S_K}, s2, 7")
    a(f"s_lshr_b32 s{S_Q}, s2, 3")
    a(f"s_lshr_b32 s{S_B}, s{S_K}, 2")
    a(f"s_and_b32 s{S_NT}, s{S_K}, 3")
    a(f"s_lshl_b32 s{S_NT}, s{S_NT}, 1")
    a(f"s_lshr_b32 s{S_T0}, s{S_Q}, 4")
    a(f"s_add_u32 s{S_NT}, s{S_NT}, s{S_T0}")
    a(f"s_and_b32 s{S_MT}, s{S_Q}, 15")
    a(f"v_lshrrev_b32 v{V_T0}, 6, v0")
    a(f"v_and_b32 v{V_LANE}, 63, v0")
    a(f"v_readfirstlane_b32 s{S_WAVE}, v{V_T0}")
    a("s_nop 3")
    a(f"s_and_b32 s{S_KQ}, s{S_WAVE}, 3")
    a(f"s_lshr_b32 s{S_NH}, s{S_WAVE}, 2")


def make_srd(a, srd, base, nbytes):
    a(f"s_mov_b32 s{srd}, s{base}")
    a(f"s_and_b32 s{srd+1}, s{base+1}, 0xffff")
    a(f"s_mov_b32 s{srd+2}, {nbytes}")
    a(f"s_mov_b32 s{srd+3}, 0x00020000")


class VQ:
    def __init__(self):
        self.q = []

    def issue(self, tag):
        self.q.append(tag)

    def need(self, tags):
        idx = max(self.q.index(t) for t in tags)
        return len(self.q) - 1 - idx


A_SCHED = {12: [(0, 0), (0, 1)], 13: [(0, 2), (0, 3)], 14: [(0, 4), (0, 5)],
           0: [(0, 6), (0, 7)], 1: [(0, 8), (0, 9)], 2: [(0, 10), (1, 0)]}
for _i in range(3, 12):
    A_SCHED[_i] = [(1, _i - 2)]


def a_read(a, par, g, buf):
    e = 2 * g + par
    off = buf * XBUF + (e >> 3) * XBLK + (e & 7) * 128
    a(f"ds_read_b128 {vr(afrag(par, g), 4)}, v{V_AADDR} offset:{off}")


def b_read(a, t):
    slot = t % NSLOT
    b = V_B + 4 * (t & 1)
    a(f"ds_read_b64_tr_b16 {vr(b, 2)}, v{V_BADDR} offset:{slot*1024}")
    a(f"ds_read_b64_tr_b16 {vr(b+2, 2)}, v{V_BADDR} offset:{slot*1024+256}")


def w_dma(a, trel):
    slot = trel % NSLOT
    srel, sig = trel // 15, trel % 15
    off = tap_of(sig) * 524288 + srel * 65536
    a(f"s_add_u32 m0, s{S_WRING}, {slot*1024}")
    a(f"s_add_u32 s{S_T0}, s{S_ITW}, {off}")
    a(f"buffer_load_dwordx4 v{V_WOFF}, {sr(SRD_W,4)}, s{S_T0} offen lds")


def x_dma(a, srel, j):
    buf = srel & 1
    if j < 4:
        a(f"s_add_u32 m0, s{S_XM0}, {buf*XBUF + j*8*XBLK}")
        a(f"s_add_u32 s{S_T1}, s{S_ITX}, {j*65536 + srel*128}")
        a(f"buffer_load_dwordx4 v{V_XOFF}, {sr(SRD_X,4)}, s{S_T1} offen lds")
    else:
        a(f"s_add_u32 m0, s{S_XM05}, {buf*XBUF}")
        a(f"s_add_u32 s{S_T1}, s{S_ITX}, {srel*128}")
        a(f"buffer_load_dwordx4 v{V_XOFF5}, {sr(SRD_X,4)}, s{S_T1} offen lds")


def mfma(a, f, par, g, t):
    acc = V_ACC + 16 * f
    b = V_B + 4 * (t & 1)
    a(f"v_mfma_f32_32x32x16_bf16 {vr(acc,16)}, {vr(afrag(par,g),4)}, {vr(b,4)}, {vr(acc,16)}")


def cross_half_sum(a, v, t0, t1):
    a(f"v_mov_b32 v{t0}, v{v}")
    a(f"v_mov_b32 v{t1}, v{v}")
    a("s_nop 1")
    a(f"v_permlane32_swap_b32 v{t0}, v{t1}")
    a("s_nop 1")
    a(f"v_add_f32 v{v}, v{t0}, v{t1}")


def gen_kernel1(a):
    kname = NAME + "_kernel"
    a.lines.append(f".globl {kname}")
    a.lines.append(".p2align 8")
    a.lines.append(f".type {kname},@function")
    a.label(kname)
    a("s_cmp_ge_u32 s2, 256")
    a("s_cbranch_scc1 L1_end")
    a(f"s_load_dwordx4 {sr(S_X,4)}, s[0:1], 0")
    a(f"s_load_dwordx2 {sr(S_BI,2)}, s[0:1], 16")
    a(f"s_load_dwordx2 {sr(S_WS,2)}, s[0:1], 56")
    decode_wg(a)
    a(f"v_and_b32 v{V_T0}, 31, v{V_LANE}")
    a(f"v_mul_u32_u24 v{V_AADDR}, {XBLK}, v{V_T0}")
    a(f"v_lshrrev_b32 v{V_T1}, 5, v{V_LANE}")
    a(f"s_lshl_b32 s{S_T0}, s{S_KQ}, 1")
    a(f"v_add_u32 v{V_T2}, s{S_T0}, v{V_T1}")
    a(f"v_lshl_add_u32 v{V_AADDR}, v{V_T2}, 4, v{V_AADDR}")
    a(f"s_mul_i32 s{S_WRING}, s{S_WAVE}, {NSLOT*1024}")
    a(f"s_add_u32 s{S_WRING}, s{S_WRING}, {WRING}")
    a(f"v_lshlrev_b32 v{V_BADDR}, 9, v{V_T1}")
    a(f"v_bfe_u32 v{V_T2}, v{V_LANE}, 2, 2")
    a(f"v_lshl_add_u32 v{V_BADDR}, v{V_T2}, 6, v{V_BADDR}")
    a(f"v_bfe_u32 v{V_T2}, v{V_LANE}, 4, 1")
    a(f"v_lshl_add_u32 v{V_BADDR}, v{V_T2}, 5, v{V_BADDR}")
    a(f"v_and_b32 v{V_T2}, 3, v{V_LANE}")
    a(f"v_lshl_add_u32 v{V_BADDR}, v{V_T2}, 3, v{V_BADDR}")
    a(f"v_add_u32 v{V_BADDR}, s{S_WRING}, v{V_BADDR}")
    a(f"v_lshrrev_b32 v{V_T2}, 2, v{V_LANE}")
    a(f"s_lshl_b32 s{S_T0}, s{S_KQ}, 4")
    a(f"v_add_u32 v{V_T2}, s{S_T0}, v{V_T2}")
    a(f"v_lshlrev_b32 v{V_WOFF}, 10, v{V_T2}")
    a(f"v_and_b32 v{V_T2}, 3, v{V_LANE}")
    a(f"v_lshl_add_u32 v{V_WOFF}, v{V_T2}, 4, v{V_WOFF}")
    a(f"s_lshl_b32 s{S_T0}, s{S_NT}, 7")
    a(f"s_lshl_b32 s{S_T1}, s{S_NH}, 6")
    a(f"s_add_u32 s{S_T0}, s{S_T0}, s{S_T1}")
    a(f"v_add_u32 v{V_WOFF}, s{S_T0}, v{V_WOFF}")
    a(f"v_lshrrev_b32 v{V_T2}, 3, v{V_LANE}")
    a(f"v_lshlrev_b32 v{V_T2}, 10, v{V_T2}")
    a(f"v_and_b32 v{V_T3}, 7, v{V_LANE}")
    a(f"v_lshl_add_u32 v{V_T2}, v{V_T3}, 4, v{V_T2}")
    a(f"s_lshl_b32 s{S_T0}, s{S_WAVE}, 13")
    a(f"v_add_u32 v{V_XOFF}, s{S_T0}, v{V_T2}")
    a(f"s_and_b32 s{S_T0}, s{S_WAVE}, 1")
    a(f"s_add_u32 s{S_T0}, s{S_T0}, 32")
    a(f"s_lshl_b32 s{S_T1}, s{S_T0}, 13")
    a(f"v_add_u32 v{V_XOFF5}, s{S_T1}, v{V_T2}")
    a(f"s_mul_i32 s{S_XM05}, s{S_T0}, {XBLK}")
    a(f"s_mul_i32 s{S_XM0}, s{S_WAVE}, {XBLK}")
    a(f"s_lshl_b32 s{S_T0}, s{S_NT}, 7")
    a(f"s_lshl_b32 s{S_T1}, s{S_NH}, 6")
    a(f"s_add_u32 s{S_T0}, s{S_T0}, s{S_T1}")
    a(f"v_lshl_add_u32 v{V_T3}, v{V_T0}, 1, s{S_T0}")
    a(f"s_mov_b32 s{S_ITW}, 0")
    a(f"s_mov_b32 s{S_ITX}, 0")
    a(f"s_mov_b32 s{S_IT}, 0")
    a(f"s_mul_i32 s{S_T0}, s{S_B}, 4096000")
    a(f"s_lshl_b32 s{S_T1}, s{S_MT}, 18")
    a(f"s_add_u32 s{S_T2}, s{S_T0}, s{S_T1}")
    a("s_waitcnt lgkmcnt(0)")
    a(f"s_add_u32 s{SRD_X}, s{S_X}, s{S_T2}")
    a(f"s_addc_u32 s{SRD_X+1}, s{S_X+1}, 0")
    a(f"s_and_b32 s{SRD_X+1}, s{SRD_X+1}, 0xffff")
    a(f"s_sub_u32 s{SRD_X+2}, {X_BYTES}, s{S_T2}")
    a(f"s_mov_b32 s{SRD_X+3}, 0x00020000")
    make_srd(a, SRD_W, S_W, W_BYTES)
    make_srd(a, SRD_WS, S_WS, WS_BYTES)
    make_srd(a, SRD_BI, S_BI, 1024)

    q = VQ()
    for j in range(5):
        x_dma(a, 0, j)
        q.issue(('X', 0, j))
    a(f"buffer_load_ushort v{V_BIAS}, v{V_T3}, {sr(SRD_BI,4)}, 0 offen")
    q.issue('bias')
    for t in range(10):
        w_dma(a, t)
        q.issue(('W', t))
        if t >= 7:
            x_dma(a, 1, t - 7)
            q.issue(('X', 1, t - 7))
    for i in range(64):
        a(f"v_mov_b32 v{V_ACC+i}, 0")
    n = q.need([('X', 0, j) for j in range(5)])
    a(f"s_waitcnt vmcnt({n})")
    a("s_barrier")
    for sig in (12, 13, 14):
        for (par, g) in A_SCHED[sig]:
            a_read(a, par, g, 0)
    n = q.need([('W', 0)])
    a(f"s_waitcnt vmcnt({n})")
    b_read(a, 0)

    waits = {}
    for it in range(4):
        for u in range(30):
            t = 30 * it + u
            s, sig = t // 15, t % 15
            need = [('W', t + 1)]
            if sig == 12:
                need += [('X', s + 1, j) for j in range(5)]
            n = q.need(need)
            waits[u] = min(waits.get(u, 99), n)
            q.issue(('W', t + 10))
            if sig >= 12:
                q.issue(('X', s + 2, sig - 12))
            elif sig <= 1:
                q.issue(('X', s + 1, 3 + sig))

    a.label("L1_loop")
    for u in range(30):
        srel, sig = u // 15, u % 15
        par, j = (0, sig) if sig < 8 else (1, sig - 8)
        a.c(f"step u={u} stage_rel={srel} sig={sig} tap={tap_of(sig)}")
        a(f"s_waitcnt vmcnt({waits[u]}) lgkmcnt(0)")
        mfma(a, 0, par, j + 0, u)
        b_read(a, u + 1)
        mfma(a, 1, par, j + 1, u)
        if u == 20:
            a(f"s_cmp_eq_u32 s{S_IT}, 3")
            a(f"s_cselect_b32 s{SRD_W+2}, 0, s{SRD_W+2}")
        w_dma(a, u + 10)
        mfma(a, 2, par, j + 2, u)
        if sig == 12:
            a("s_barrier")
        if u == 12:
            a(f"s_cmp_eq_u32 s{S_IT}, 3")
            a(f"s_cselect_b32 s{SRD_X+2}, 0, s{SRD_X+2}")
        for (p2, g2) in A_SCHED[sig]:
            a_read(a, p2, g2, (srel + (1 if sig >= 12 else 0)) & 1)
        if sig >= 12:
            x_dma(a, srel + 2, sig - 12)
        elif sig <= 1:
            x_dma(a, srel + 1, 3 + sig)
        mfma(a, 3, par, j + 3, u)
    a(f"s_add_u32 s{S_ITW}, s{S_ITW}, 131072")
    a(f"s_add_u32 s{S_ITX}, s{S_ITX}, 256")
    a(f"s_add_u32 s{S_IT}, s{S_IT}, 1")
    a(f"s_cmp_lt_u32 s{S_IT}, 4")
    a("s_cbranch_scc1 L1_loop")

    a.c("epilogue")
    a("s_waitcnt vmcnt(0) lgkmcnt(0)")
    a("s_nop 15")
    a("s_barrier")
    a(f"s_lshl_b32 s{S_T0}, s{S_NH}, 4")
    a(f"s_add_u32 s{S_T0}, s{S_T0}, s{S_KQ}")
    a(f"s_lshl_b32 s{S_T0}, s{S_T0}, 12")
    a(f"v_lshl_add_u32 v{V_T0}, v{V_LANE}, 4, s{S_T0}")
    for f in range(4):
        for q4 in range(4):
            a(f"ds_write_b128 v{V_T0}, {vr(V_ACC+16*f+4*q4,4)} offset:{f*16384+q4*1024}")
    a(f"s_lshl_b32 s{S_T0}, s{S_NH}, 4")
    a(f"s_lshl_b32 s{S_T1}, s{S_KQ}, 2")
    a(f"s_add_u32 s{S_T0}, s{S_T0}, s{S_T1}")
    a(f"s_lshl_b32 s{S_T0}, s{S_T0}, 12")
    a(f"v_lshl_add_u32 v{V_T1}, v{V_LANE}, 4, s{S_T0}")
    a(f"s_movk_i32 s{S_NVAL}, 128")
    a(f"s_cmp_eq_u32 s{S_MT}, 15")
    a(f"s_cselect_b32 s{S_NVAL}, 73, s{S_NVAL}")
    a(f"v_lshrrev_b32 v{V_T2}, 5, v{V_LANE}")
    a(f"v_lshl_add_u32 v{V_T2}, v{V_T2}, 4, s{S_KQ}")
    for v in range(16):
        cv = 32 * (v >> 2) + 4 * (v & 3)
        a(f"s_sub_i32 s{S_T0}, s{S_NVAL}, {cv}")
        a(f"v_cmp_gt_i32 {sr(S_MASK+2*v,2)}, s{S_T0}, v{V_T2}")
    a(f"s_sub_u32 s{S_CNT}, s{S_NVAL}, s{S_KQ}")
    a(f"s_add_u32 s{S_CNT}, s{S_CNT}, 3")
    a(f"s_lshr_b32 s{S_CNT}, s{S_CNT}, 2")
    a(f"v_lshlrev_b32 v{V_BIAS}, 16, v{V_BIAS}")
    a("s_waitcnt lgkmcnt(0)")
    a("s_barrier")
    P = V_A
    for k2 in range(4):
        for q4 in range(4):
            a(f"ds_read_b128 {vr(P+16*k2+4*q4,4)}, v{V_T1} offset:{k2*4096+q4*1024}")
    Y = V_ACC
    a("s_waitcnt lgkmcnt(8)")
    for v in range(16):
        a(f"v_add_f32 v{Y+v}, v{P+v}, v{P+16+v}")
    a("s_waitcnt lgkmcnt(0)")
    for v in range(16):
        a(f"v_add_f32 v{P+32+v}, v{P+32+v}, v{P+48+v}")
    for v in range(16):
        a(f"v_add_f32 v{Y+v}, v{Y+v}, v{P+32+v}")
    for v in range(16):
        a(f"v_add_f32 v{Y+v}, v{Y+v}, v{V_BIAS}")
    a(f"s_lshl_b32 s{S_T0}, s2, 15")
    a(f"s_lshl_b32 s{S_T1}, s{S_WAVE}, 12")
    a(f"s_add_u32 s{S_T0}, s{S_T0}, s{S_T1}")
    a(f"v_lshl_add_u32 v{V_T0}, v{V_LANE}, 4, s{S_T0}")
    for q4 in range(4):
        a(f"buffer_store_dwordx4 {vr(Y+4*q4,4)}, v{V_T0}, {sr(SRD_WS,4)}, 0 offen offset:{q4*1024}")
    T = P
    for v in range(16):
        a(f"v_cndmask_b32 v{T+v}, 0, v{Y+v}, {sr(S_MASK+2*v,2)}")
    for st in (8, 4, 2, 1):
        for v in range(st):
            a(f"v_add_f32 v{T+v}, v{T+v}, v{T+v+st}")
    VS, VM2 = V_T4, V_T5
    a(f"v_mov_b32 v{VS}, v{T}")
    cross_half_sum(a, VS, V_T6, V_T7)
    a(f"v_cvt_f32_u32 v{V_T6}, s{S_CNT}")
    a(f"v_rcp_f32 v{V_T6}, v{V_T6}")
    a("s_nop 0")
    a(f"v_mul_f32 v{V_T6}, v{VS}, v{V_T6}")
    for v in range(16):
        a(f"v_sub_f32 v{T+v}, v{Y+v}, v{V_T6}")
    for v in range(16):
        a(f"v_cndmask_b32 v{T+v}, 0, v{T+v}, {sr(S_MASK+2*v,2)}")
    for v in range(16):
        a(f"v_mul_f32 v{T+v}, v{T+v}, v{T+v}")
    for st in (8, 4, 2, 1):
        for v in range(st):
            a(f"v_add_f32 v{T+v}, v{T+v}, v{T+v+st}")
    a(f"v_mov_b32 v{VM2}, v{T}")
    cross_half_sum(a, VM2, V_T6, V_T7)
    a(f"s_lshl_b32 s{S_T0}, s{S_KQ}, 9")
    a(f"s_lshl_b32 s{S_T1}, s{S_NH}, 8")
    a(f"s_add_u32 s{S_T0}, s{S_T0}, s{S_T1}")
    a(f"s_add_u32 s{S_T0}, s{S_T0}, 131072")
    a(f"v_and_b32 v{V_T0}, 31, v{V_LANE}")
    a(f"v_lshl_add_u32 v{V_T0}, v{V_T0}, 3, s{S_T0}")
    a(f"ds_write_b64 v{V_T0}, {vr(VS,2)}")
    a("s_waitcnt lgkmcnt(0)")
    a("s_barrier")
    a(f"s_cmp_lg_u32 s{S_WAVE}, 0")
    a("s_cbranch_scc1 L1_end")
    a(f"v_lshlrev_b32 v{V_T0}, 3, v{V_LANE}")
    a(f"v_add_u32 v{V_T0}, 131072, v{V_T0}")
    for k in range(4):
        a(f"ds_read_b64 {vr(T+2*k,2)}, v{V_T0} offset:{k*512}")
    N = T + 8
    for k in range(4):
        a(f"s_sub_u32 s{S_T0}, s{S_NVAL}, {k-3}" if k < 3 else f"s_mov_b32 s{S_T0}, s{S_NVAL}")
        a(f"s_lshr_b32 s{S_T0}, s{S_T0}, 2")
        a(f"v_cvt_f32_u32 v{N+k}, s{S_T0}")
    for k in range(4):
        a(f"v_rcp_f32 v{N+4+k}, v{N+k}")
    a(f"v_cvt_f32_u32 v{V_T6}, s{S_NVAL}")
    a(f"v_rcp_f32 v{V_T6}, v{V_T6}")
    a("s_waitcnt lgkmcnt(0)")
    a(f"v_add_f32 v{VS}, v{T+0}, v{T+2}")
    a(f"v_add_f32 v{V_T7}, v{T+4}, v{T+6}")
    a(f"v_add_f32 v{VS}, v{VS}, v{V_T7}")
    a(f"v_mul_f32 v{V_T6}, v{VS}, v{V_T6}")
    a(f"v_add_f32 v{VM2}, v{T+1}, v{T+3}")
    a(f"v_add_f32 v{V_T7}, v{T+5}, v{T+7}")
    a(f"v_add_f32 v{VM2}, v{VM2}, v{V_T7}")
    for k in range(4):
        a(f"v_fma_f32 v{V_T7}, v{T+2*k}, v{N+4+k}, -v{V_T6}")
        a(f"v_mul_f32 v{V_T7}, v{V_T7}, v{V_T7}")
        a(f"v_fmac_f32 v{VM2}, v{V_T7}, v{N+k}")
    a(f"s_lshl_b32 s{S_T0}, s{S_B}, 3")
    a(f"s_add_u32 s{S_T0}, s{S_T0}, s{S_NT}")
    a(f"s_lshl_b32 s{S_T0}, s{S_T0}, 4")
    a(f"s_add_u32 s{S_T0}, s{S_T0}, s{S_MT}")
    a(f"s_lshl_b32 s{S_T0}, s{S_T0}, 9")
    a(f"s_add_u32 s{S_T0}, s{S_T0}, {STATS_WS}")
    a(f"v_lshl_add_u32 v{V_T0}, v{V_LANE}, 3, s{S_T0}")
    a(f"buffer_store_dwordx2 {vr(VS,2)}, v{V_T0}, {sr(SRD_WS,4)}, 0 offen")
    a.label("L1_end")
    a("s_endpgm")


def gen_kernel2(a):
    kname = "norm_gelu_kernel"
    a.lines.append(f".globl {kname}")
    a.lines.append(".p2align 8")
    a.lines.append(f".type {kname},@function")
    a.label(kname)
    S_G, S_BE, S_OUT = 4, 6, 8
    SRD_G, SRD_BE, SRD_OUT = 20, 24, 32
    a("s_cmp_ge_u32 s2, 256")
    a("s_cbranch_scc1 L2_end")
    a(f"s_load_dwordx4 {sr(S_G,4)}, s[0:1], 24")
    a(f"s_load_dwordx2 {sr(S_OUT,2)}, s[0:1], 40")
    a(f"s_load_dwordx2 {sr(S_WS,2)}, s[0:1], 56")
    decode_wg(a)
    a("s_waitcnt lgkmcnt(0)")
    make_srd(a, SRD_G, S_G, 1024)
    make_srd(a, SRD_BE, S_BE, 1024)
    make_srd(a, SRD_OUT, S_OUT, OUT_BYTES)
    make_srd(a, SRD_WS, S_WS, WS_BYTES)
    Y = 32
    ST = 48
    VG, VBE = 6, 7
    a(f"s_lshl_b32 s{S_T0}, s{S_B}, 3")
    a(f"s_add_u32 s{S_T0}, s{S_T0}, s{S_NT}")
    a(f"s_lshl_b32 s{S_T0}, s{S_T0}, 13")
    a(f"s_lshl_b32 s{S_T1}, s{S_NH}, 8")
    a(f"s_add_u32 s{S_T0}, s{S_T0}, s{S_T1}")
    a(f"s_add_u32 s{S_T0}, s{S_T0}, {STATS_WS}")
    a(f"v_and_b32 v{V_T0}, 31, v{V_LANE}")
    a(f"v_lshrrev_b32 v{V_T1}, 5, v{V_LANE}")
    a(f"v_lshl_add_u32 v{V_T2}, v{V_T0}, 3, s{S_T0}")
    a(f"v_lshl_add_u32 v{V_T2}, v{V_T1}, 12, v{V_T2}")
    for i in range(8):
        a(f"buffer_load_dwordx2 {vr(ST+2*i,2)}, v{V_T2}, {sr(SRD_WS,4)}, 0 offen offset:{i*512}")
    a(f"s_lshl_b32 s{S_T0}, s{S_NT}, 7")
    a(f"s_lshl_b32 s{S_T1}, s{S_NH}, 6")
    a(f"s_add_u32 s{S_T0}, s{S_T0}, s{S_T1}")
    a(f"v_lshl_add_u32 v{V_T3}, v{V_T0}, 1, s{S_T0}")
    a(f"buffer_load_ushort v{VG}, v{V_T3}, {sr(SRD_G,4)}, 0 offen")
    a(f"buffer_load_ushort v{VBE}, v{V_T3}, {sr(SRD_BE,4)}, 0 offen")
    a(f"s_lshl_b32 s{S_T0}, s2, 15")
    a(f"s_lshl_b32 s{S_T1}, s{S_WAVE}, 12")
    a(f"s_add_u32 s{S_T0}, s{S_T0}, s{S_T1}")
    a(f"v_lshl_add_u32 v{V_T3}, v{V_LANE}, 4, s{S_T0}")
    for q4 in range(4):
        a(f"buffer_load_dwordx4 {vr(Y+4*q4,4)}, v{V_T3}, {sr(SRD_WS,4)}, 0 offen offset:{q4*1024}")
    a(f"v_cmp_eq_u32 vcc, 1, v{V_T1}")
    a(f"v_mov_b32 v8, 0x43000000")
    a(f"v_mov_b32 v9, 0x42920000")
    a(f"v_cndmask_b32 v8, v8, v9, vcc")
    a(f"v_rcp_f32 v9, v8")
    a("s_waitcnt vmcnt(6)")
    a(f"v_add_f32 v10, v{ST}, v{ST+2}")
    for i in range(2, 8):
        a(f"v_add_f32 v10, v10, v{ST+2*i}")
    cross_half_sum(a, 10, 12, 13)
    a("s_mov_b32 s50, 0x3a0387ed")
    import struct
    inv = struct.unpack("<I", struct.pack("<f", 1.0 / 1993.0))[0]
    a.lines[-1] = f"    s_mov_b32 s50, {inv:#x}"
    a("v_mul_f32 v10, s50, v10")
    a(f"v_add_f32 v11, v{ST+1}, v{ST+3}")
    for i in range(2, 8):
        a(f"v_add_f32 v11, v11, v{ST+2*i+1}")
    inv128 = struct.unpack("<I", struct.pack("<f", 1.0 / 128.0))[0]
    a(f"s_mov_b32 s51, {inv128:#x}")
    a("s_mov_b32 s52, 0x43000000")
    for i in range(8):
        if i < 7:
            a(f"v_fma_f32 v12, v{ST+2*i}, s51, -v10")
            a("v_mul_f32 v12, v12, v12")
            a("v_fmac_f32 v11, s52, v12")
        else:
            a(f"v_fma_f32 v12, v{ST+2*i}, v9, -v10")
            a("v_mul_f32 v12, v12, v12")
            a("v_fmac_f32 v11, v8, v12")
    cross_half_sum(a, 11, 12, 13)
    eps = struct.unpack("<I", struct.pack("<f", 1e-5))[0]
    a(f"v_mov_b32 v12, {eps:#x}")
    a("v_fmac_f32 v12, s50, v11")
    a("v_rsq_f32 v12, v12")
    a("s_waitcnt vmcnt(4)")
    a(f"v_lshlrev_b32 v{VG}, 16, v{VG}")
    a(f"v_lshlrev_b32 v{VBE}, 16, v{VBE}")
    a(f"v_mul_f32 v12, v12, v{VG}")
    a(f"v_fma_f32 v13, -v10, v12, v{VBE}")
    import math
    k0 = math.sqrt(2.0 / math.pi)
    c0 = -2.0 * k0 * math.log2(math.e)
    c1 = c0 * 0.044715
    f2u = lambda x: struct.unpack("<I", struct.pack("<f", x))[0]
    a(f"s_mov_b32 s53, {f2u(c0):#x}")
    a(f"s_mov_b32 s54, {f2u(c1):#x}")
    a("v_mov_b32 v14, s53")
    a(f"v_lshl_add_u32 v{V_T2}, v{V_T1}, 4, s{S_KQ}")
    a(f"v_lshlrev_b32 v{V_T2}, 7, v{V_T2}")
    a(f"v_lshl_add_u32 v{V_T2}, v{V_T0}, 1, v{V_T2}")
    a(f"s_lshl_b32 s{S_T1}, s{S_NH}, 6")
    a(f"v_add_u32 v{V_T2}, s{S_T1}, v{V_T2}")
    a("s_waitcnt vmcnt(0)")
    Z = 64
    E = 80
    for v in range(16):
        a(f"v_fma_f32 v{Z+v}, v{Y+v}, v12, v13")
    for v in range(16):
        a(f"v_mul_f32 v{E+v}, v{Z+v}, v{Z+v}")
    for v in range(16):
        a(f"v_fma_f32 v{E+v}, v{E+v}, s54, v14")
    for v in range(16):
        a(f"v_mul_f32 v{E+v}, v{E+v}, v{Z+v}")
    for v in range(16):
        a(f"v_exp_f32 v{E+v}, v{E+v}")
    for v in range(16):
        a(f"v_add_f32 v{E+v}, 1.0, v{E+v}")
    for v in range(16):
        a(f"v_rcp_f32 v{E+v}, v{E+v}")
    for v in range(16):
        a(f"v_mul_f32 v{Z+v}, v{Z+v}, v{E+v}")
    for v in range(0, 16, 2):
        a(f"v_cvt_pk_bf16_f32 v{E+v}, v{Z+v}, v{Z+v+1}")
    for v in range(0, 16, 2):
        r0 = 32 * (v >> 2) + 4 * (v & 3)
        r1 = 32 * ((v + 1) >> 2) + 4 * ((v + 1) & 3)
        a(f"ds_write_b16 v{V_T2}, v{E+v} offset:{r0*128}")
        a(f"ds_write_b16_d16_hi v{V_T2}, v{E+v} offset:{r1*128}")
    a(f"s_lshl_b32 s{S_T0}, s{S_WAVE}, 11")
    a(f"v_lshl_add_u32 v{V_T3}, v{V_LANE}, 4, s{S_T0}")
    a(f"v_lshrrev_b32 v8, 3, v{V_LANE}")
    a(f"s_lshl_b32 s{S_T0}, s{S_WAVE}, 4")
    a(f"s_lshl_b32 s{S_T1}, s{S_MT}, 7")
    a(f"s_add_u32 s{S_T0}, s{S_T0}, s{S_T1}")
    a(f"v_add_u32 v8, s{S_T0}, v8")
    a(f"v_add_u32 v9, 8, v8")
    a(f"s_mul_i32 s{S_T0}, s{S_B}, 2040832")
    a(f"s_lshl_b32 s{S_T1}, s{S_NT}, 7")
    a(f"s_add_u32 s{S_T0}, s{S_T0}, s{S_T1}")
    a(f"v_and_b32 v10, 7, v{V_LANE}")
    a(f"v_lshl_add_u32 v10, v10, 4, s{S_T0}")
    a(f"v_lshl_add_u32 v11, v8, 10, v10")
    a(f"v_lshl_add_u32 v12, v9, 10, v10")
    a(f"v_mov_b32 v13, 0x7f000000")
    a(f"s_movk_i32 s{S_T0}, 1993")
    a(f"v_cmp_gt_u32 vcc, s{S_T0}, v8")
    a(f"v_cmp_gt_u32 s[50:51], s{S_T0}, v9")
    a("s_nop 1")
    a(f"v_cndmask_b32 v11, v13, v11, vcc")
    a(f"v_cndmask_b32 v12, v13, v12, s[50:51]")
    a("s_waitcnt lgkmcnt(0)")
    a("s_barrier")
    a(f"ds_read_b128 v[16:19], v{V_T3}")
    a(f"ds_read_b128 v[20:23], v{V_T3} offset:1024")
    a("s_waitcnt lgkmcnt(1)")
    a(f"buffer_store_dwordx4 v[16:19], v11, {sr(SRD_OUT,4)}, 0 offen")
    a("s_waitcnt lgkmcnt(0)")
    a(f"buffer_store_dwordx4 v[20:23], v12, {sr(SRD_OUT,4)}, 0 offen")
    a.label("L2_end")
    a("s_endpgm")


def kd(name, nvgpr):
    acc = (nvgpr + 3) // 4 * 4
    return f""".p2align 6
.amdhsa_kernel {name}
  .amdhsa_next_free_vgpr {nvgpr}
  .amdhsa_next_free_sgpr 96
  .amdhsa_accum_offset {acc}
  .amdhsa_group_segment_fixed_size 0
  .amdhsa_kernarg_size 64
  .amdhsa_user_sgpr_count 2
  .amdhsa_user_sgpr_kernarg_segment_ptr 1
  .amdhsa_system_sgpr_workgroup_id_x 1
  .amdhsa_float_denorm_mode_32 3
.end_amdhsa_kernel
"""


def main():
    out = sys.argv[1] if len(sys.argv) > 1 else f"cdna_kernels/{NAME}.s"
    hdr = f"""; conv stem (HuBERT): conv1d(k=15,s=2) as implicit GEMM + per-channel norm + GELU
; @launch kernel={NAME}_kernel grid=(256,1,1) block=(512,1,1) lds={LDS1}
; @launch kernel=norm_gelu_kernel grid=(256,1,1) block=(512,1,1) lds=16384
.amdgcn_target "amdgcn-amd-amdhsa--gfx950"
.text
"""
    a = Asm()
    gen_kernel1(a)
    gen_kernel2(a)
    txt = hdr + a.text() + '.section .rodata,"a"\n' + kd(NAME + "_kernel", NVGPR1) + kd("norm_gelu_kernel", 96)
    open(out, "w").write(txt)


if __name__ == "__main__":
    main()
```

```python
import sys
import struct
import math

NAME = "standalone__self_sup_conv_stem_hubert__speech"
ARGS = sys.argv[1:]
DIAG = "--diag" in ARGS
ROT = "--norot" not in ARGS
TOUCH = "--notouch" not in ARGS
TFULL = "--tfull" in ARGS
TPACE = 0
TPRE = 0
for _a in ARGS:
    if _a.startswith("--tpace="):
        TPACE = int(_a[8:])
    if _a.startswith("--tpre="):
        TPRE = int(_a[7:])

X_BYTES = 2 * 4000 * 512 * 2
W_BYTES = 15 * 512 * 512 * 2
OUT_BYTES = 2 * 1993 * 512 * 2
WS_BYTES = 268435456
XBLK = 1040
XBUF = 34 * XBLK
WRING = 2 * XBUF
NSLOT = 10
LDS1 = WRING + NSLOT * 8192
STATS_WS = 0
L_ST, L_SC, L_SH, L_EX, L_YT = 0, 1024, 1280, 2048, 34816


def f2u(x):
    return struct.unpack("<I", struct.pack("<f", x))[0]


class Asm:
    def __init__(self):
        self.lines = []

    def __call__(self, s):
        self.lines.append("    " + s)

    def label(self, l):
        self.lines.append(l + ":")

    def c(self, s):
        self.lines.append("    ; " + s)

    def text(self):
        return "\n".join(self.lines) + "\n"


def vr(a, n=1):
    return f"v{a}" if n == 1 else f"v[{a}:{a+n-1}]"


def sr(a, n=1):
    return f"s{a}" if n == 1 else f"s[{a}:{a+n-1}]"


V_LANE, V_T0, V_T1, V_T2 = 1, 2, 3, 4
V_BADDR2, V_AADDR, V_BADDR, V_WOFF, V_XOFF, V_XOFF5, V_BIAS = 5, 6, 7, 8, 9, 10, 11
V_E = 12
V_O = 72
V_B = 128
V_ACC = 136
NVGPR = 168

S_X, S_W, S_BI, S_GA = 4, 6, 8, 10
S_BE, S_OUT, S_DBG, S_WS = 12, 14, 16, 18
SRD_X, SRD_W, SRD_WS, SRD_P = 20, 24, 28, 32
SRD_OUT, SRD_DBG = 36, 40
S_K, S_Q, S_B, S_NT, S_MT = 44, 45, 46, 47, 48
S_WAVE, S_KH, S_NQ, S_WM0, S_XM0, S_XM05 = 49, 50, 51, 52, 53, 54
S_ITW, S_IT, S_T0, S_T1, S_T2, S_T3 = 55, 56, 57, 58, 59, 60
S_SW = 61
S_SX = 65
S_NVAL, S_CNT, S_GRP = 69, 70, 71
MASKS = [20, 22, 24, 26, 62, 64, 66] + list(range(72, 90, 2))


def frag(par, g):
    return (V_E if par == 0 else V_O) + 4 * g


def tap_of(sig):
    return 2 * sig if sig < 8 else 2 * (sig - 8) + 1


def make_srd(a, srd, base, nbytes):
    a(f"s_mov_b32 s{srd}, s{base}")
    a(f"s_and_b32 s{srd+1}, s{base+1}, 0xffff")
    a(f"s_mov_b32 s{srd+2}, {nbytes}")
    a(f"s_mov_b32 s{srd+3}, 0x00020000")


class VQ:
    def __init__(self):
        self.q = []

    def issue(self, tag):
        self.q.append(tag)

    def need(self, tags):
        idx = max(self.q.index(t) for t in tags)
        return len(self.q) - 1 - idx


XSW = 11
_seq = [(0, g) for g in range(15)] + [(1, g) for g in range(14)]
A_SCHED = {}
_order = [11, 12, 13, 14, 0, 1, 2, 3, 4, 5, 6, 7, 8, 9, 10]
for _i, _sig in enumerate(_order):
    A_SCHED[_sig] = _seq[2 * _i: 2 * _i + 2]
X_SCHED = {11: (2, 0), 12: (2, 1), 13: (2, 2), 14: (2, 3), 0: (1, 4)}


def stage_regs(a):
    for rel in range(4):
        a(f"s_add_u32 s{S_T0}, s{S_ITW}, {rel}")
        a(f"s_and_b32 s{S_T0}, s{S_T0}, 7")
        a(f"s_lshl_b32 s{S_SW+rel}, s{S_T0}, 16")
        a(f"s_lshl_b32 s{S_SX+rel}, s{S_T0}, 7")


def a_read(a, par, g, buf):
    e = 2 * g + par
    off = buf * XBUF + (e >> 3) * XBLK + (e & 7) * 128
    a(f"ds_read_b128 {vr(frag(par, g), 4)}, v{V_AADDR} offset:{off}")


def b_read(a, t):
    slot = t % NSLOT
    b = V_B + 4 * (t & 1)
    va, sl = (V_BADDR, slot) if slot < 5 else (V_BADDR2, slot - 5)
    a(f"ds_read_b64_tr_b16 {vr(b, 2)}, v{va} offset:{sl*8192}")
    a(f"ds_read_b64_tr_b16 {vr(b+2, 2)}, v{va} offset:{sl*8192+512}")


def w_dma(a, trel):
    slot = trel % NSLOT
    srel, sig = trel // 15, trel % 15
    a(f"s_add_u32 m0, s{S_WM0}, {slot*8192}")
    a(f"s_add_u32 s{S_T0}, s{S_SW+srel}, {tap_of(sig) * 524288}")
    a(f"buffer_load_dwordx4 v{V_WOFF}, {sr(SRD_W,4)}, s{S_T0} offen lds")


def x_dma(a, srel, j):
    buf = srel & 1
    if j < 4:
        a(f"s_add_u32 m0, s{S_XM0}, {buf*XBUF + j*8*XBLK}")
        a(f"s_add_u32 s{S_T1}, s{S_SX+srel}, {j*65536}")
        a(f"buffer_load_dwordx4 v{V_XOFF}, {sr(SRD_X,4)}, s{S_T1} offen lds")
    else:
        a(f"s_add_u32 m0, s{S_XM05}, {buf*XBUF}")
        a(f"s_mov_b32 s{S_T1}, s{S_SX+srel}")
        a(f"buffer_load_dwordx4 v{V_XOFF5}, {sr(SRD_X,4)}, s{S_T1} offen lds")


def mfma(a, f, par, g, t):
    acc = V_ACC + 4 * f
    b = V_B + 4 * (t & 1)
    a(f"v_mfma_f32_16x16x32_bf16 {vr(acc,4)}, {vr(frag(par,g),4)}, {vr(b,4)}, {vr(acc,4)}")


def cross4_sum(a, v, t0, t1):
    a(f"v_mov_b32 v{t0}, v{v}")
    a(f"v_mov_b32 v{t1}, v{v}")
    a("s_nop 1")
    a(f"v_permlane32_swap_b32 v{t0}, v{t1}")
    a("s_nop 1")
    a(f"v_add_f32 v{v}, v{t0}, v{t1}")
    a(f"v_mov_b32 v{t0}, v{v}")
    a(f"v_mov_b32 v{t1}, v{v}")
    a("s_nop 1")
    a(f"v_permlane16_swap_b32 v{t0}, v{t1}")
    a("s_nop 1")
    a(f"v_add_f32 v{v}, v{t0}, v{t1}")


STAMPS = [90, 92, 94, 96, 98, 100]


DIAGP = "--diagp" in ARGS


def stampp(a, i):
    if DIAGP:
        a(f"s_memtime s[{STAMPS[i]}:{STAMPS[i]+1}]")


def stamp(a, i, rt=False):
    if DIAG and (rt or i == 1 or not DIAGP):
        a(f"s_mem{'real' if rt else ''}time s[{STAMPS[i]}:{STAMPS[i]+1}]")


def gen_kernel(a):
    kname = NAME + "_kernel"
    a.lines.append(f".globl {kname}")
    a.lines.append(".p2align 8")
    a.lines.append(f".type {kname},@function")
    a.label(kname)
    a("s_cmp_ge_u32 s2, 256")
    a("s_cbranch_scc1 L_end")
    stamp(a, 0, True)
    stamp(a, 1)
    a(f"s_load_dwordx16 {sr(S_X,16)}, s[0:1], 0")
    a(f"s_and_b32 s{S_K}, s2, 7")
    a(f"s_lshr_b32 s{S_Q}, s2, 3")
    a(f"s_lshr_b32 s{S_B}, s{S_K}, 2")
    a(f"s_and_b32 s{S_NT}, s{S_K}, 3")
    a(f"s_lshl_b32 s{S_NT}, s{S_NT}, 1")
    a(f"s_lshr_b32 s{S_T0}, s{S_Q}, 4")
    a(f"s_add_u32 s{S_NT}, s{S_NT}, s{S_T0}")
    a(f"s_and_b32 s{S_MT}, s{S_Q}, 15")
    a(f"v_lshrrev_b32 v{V_T0}, 6, v0")
    a(f"v_and_b32 v{V_LANE}, 63, v0")
    a(f"v_readfirstlane_b32 s{S_WAVE}, v{V_T0}")
    a(f"s_lshl_b32 s{S_GRP}, s{S_B}, 3")
    a(f"s_add_u32 s{S_GRP}, s{S_GRP}, s{S_NT}")
    a("s_nop 1")
    a(f"s_cmp_eq_u32 s{S_WAVE}, 8")
    a("s_cbranch_scc1 L_helper")
    a(f"s_lshr_b32 s{S_KH}, s{S_WAVE}, 2")
    a(f"s_and_b32 s{S_NQ}, s{S_WAVE}, 3")
    a(f"v_lshrrev_b32 v{V_T0}, 3, v{V_LANE}")
    a(f"v_and_b32 v{V_T1}, 7, v{V_LANE}")
    a(f"v_lshlrev_b32 v{V_T2}, 10, v{V_T0}")
    a(f"v_lshl_add_u32 v{V_T2}, v{V_T1}, 4, v{V_T2}")
    a(f"s_lshl_b32 s{S_T0}, s{S_WAVE}, 13")
    a(f"v_add_u32 v{V_XOFF}, s{S_T0}, v{V_T2}")
    a(f"s_and_b32 s{S_T1}, s{S_WAVE}, 1")
    a(f"s_add_u32 s{S_T2}, s{S_T1}, 32")
    a(f"s_lshl_b32 s{S_T3}, s{S_T2}, 13")
    a(f"v_add_u32 v{V_XOFF5}, s{S_T3}, v{V_T2}")
    a(f"s_mul_i32 s{S_XM05}, s{S_T2}, {XBLK}")
    a(f"s_mul_i32 s{S_XM0}, s{S_WAVE}, {XBLK}")
    a(f"v_bfe_u32 v{V_T2}, v{V_LANE}, 4, 1")
    a(f"s_lshl_b32 s{S_T1}, s{S_T1}, 1")
    a(f"v_or_b32 v{V_T2}, s{S_T1}, v{V_T2}")
    a(f"v_lshlrev_b32 v{V_T2}, 1, v{V_T2}")
    a(f"v_xor_b32 v{V_T2}, v{V_T2}, v{V_T1}")
    a(f"v_lshlrev_b32 v{V_WOFF}, 10, v{V_T0}")
    a(f"v_lshl_add_u32 v{V_WOFF}, v{V_T2}, 4, v{V_WOFF}")
    a(f"s_lshl_b32 s{S_T1}, s{S_NT}, 7")
    a(f"s_add_u32 s{S_T1}, s{S_T1}, s{S_T0}")
    a(f"v_add_u32 v{V_WOFF}, s{S_T1}, v{V_WOFF}")
    a(f"s_lshl_b32 s{S_WM0}, s{S_WAVE}, 10")
    a(f"s_add_u32 s{S_WM0}, s{S_WM0}, {WRING}")
    if ROT:
        a(f"s_mov_b32 s{S_ITW}, s{S_K}")
    else:
        a(f"s_mov_b32 s{S_ITW}, 0")
    stage_regs(a)
    a(f"s_mov_b32 s{S_IT}, 0")
    a(f"s_mul_i32 s{S_T0}, s{S_B}, 4096000")
    a(f"s_lshl_b32 s{S_T1}, s{S_MT}, 18")
    a(f"s_add_u32 s{S_T2}, s{S_T0}, s{S_T1}")
    a("s_waitcnt lgkmcnt(0)")
    a(f"s_add_u32 s{SRD_X}, s{S_X}, s{S_T2}")
    a(f"s_addc_u32 s{SRD_X+1}, s{S_X+1}, 0")
    a(f"s_and_b32 s{SRD_X+1}, s{SRD_X+1}, 0xffff")
    a(f"s_sub_u32 s{SRD_X+2}, 4096000, s{S_T1}")
    a(f"s_mov_b32 s{SRD_X+3}, 0x00020000")
    make_srd(a, SRD_W, S_W, W_BYTES)
    stampp(a, 2)

    q = VQ()
    for j in range(5):
        x_dma(a, 0, j)
        q.issue(('X', 0, j))
    npre = len([s for s in X_SCHED if s >= XSW])
    for t in range(NSLOT):
        w_dma(a, t)
        q.issue(('W', t))
        sig = t - NSLOT + 15
        if sig in X_SCHED and sig >= XSW:
            x_dma(a, 1, X_SCHED[sig][1])
            q.issue(('X', 1, X_SCHED[sig][1]))
    a(f"v_and_b32 v{V_T0}, 15, v{V_LANE}")
    a(f"v_lshrrev_b32 v{V_T1}, 4, v{V_LANE}")
    a(f"v_mul_u32_u24 v{V_AADDR}, {2*XBLK}, v{V_T0}")
    a(f"s_lshl_b32 s{S_T0}, s{S_KH}, 2")
    a(f"v_add_u32 v{V_T2}, s{S_T0}, v{V_T1}")
    a(f"v_lshl_add_u32 v{V_AADDR}, v{V_T2}, 4, v{V_AADDR}")
    a(f"v_bfe_u32 v{V_T2}, v{V_LANE}, 2, 2")
    a(f"v_lshl_add_u32 v{V_BADDR}, v{V_T1}, 3, v{V_T2}")
    a(f"v_lshlrev_b32 v{V_BADDR}, 7, v{V_BADDR}")
    a(f"v_bfe_u32 v{V_T2}, v{V_LANE}, 3, 2")
    a(f"v_xor_b32 v{V_T2}, s{S_NQ}, v{V_T2}")
    a(f"v_lshl_add_u32 v{V_BADDR}, v{V_T2}, 5, v{V_BADDR}")
    a(f"v_and_b32 v{V_T2}, 3, v{V_LANE}")
    a(f"v_lshl_add_u32 v{V_BADDR}, v{V_T2}, 3, v{V_BADDR}")
    a(f"s_lshl_b32 s{S_T0}, s{S_KH}, 12")
    a(f"s_add_u32 s{S_T0}, s{S_T0}, {WRING}")
    a(f"v_add_u32 v{V_BADDR}, s{S_T0}, v{V_BADDR}")
    a(f"v_add_u32 v{V_BADDR2}, {5*8192}, v{V_BADDR}")
    make_srd(a, SRD_P, S_BI, 1024)
    a(f"s_lshl_b32 s{S_T0}, s{S_NT}, 7")
    a(f"s_lshl_b32 s{S_T1}, s{S_NQ}, 5")
    a(f"s_add_u32 s{S_T0}, s{S_T0}, s{S_T1}")
    a(f"v_lshl_add_u32 v{V_T2}, v{V_T0}, 1, s{S_T0}")
    a(f"buffer_load_ushort v{V_BIAS}, v{V_T2}, {sr(SRD_P,4)}, 0 offen")
    q.issue('bias')
    for i in range(32):
        a(f"v_mov_b32 v{V_ACC+i}, 0")
    n = q.need([('X', 0, j) for j in range(5)] + [('W', 0)])
    stampp(a, 3)
    a(f"s_waitcnt vmcnt({n})")
    stampp(a, 4)
    a("s_barrier")
    b_read(a, 0)
    for sig in range(XSW, 15):
        for (par, g) in A_SCHED[sig]:
            a_read(a, par, g, 0)

    waits = {}
    for it in range(4):
        for u in range(30):
            t = 30 * it + u
            s, sig = t // 15, t % 15
            need = [('W', t + 1)]
            if sig == XSW:
                need += [('X', s + 1, j) for j in range(5)]
            waits[u] = min(waits.get(u, 99), q.need(need))
            q.issue(('W', t + NSLOT))
            if sig in X_SCHED:
                q.issue(('X', s + X_SCHED[sig][0], X_SCHED[sig][1]))

    stamp(a, 2)
    a.label("L_loop")
    for u in range(30):
        srel, sig = u // 15, u % 15
        par, j = (0, sig) if sig < 8 else (1, sig - 8)
        a.c(f"step u={u} stage_rel={srel} sig={sig} tap={tap_of(sig)}")
        a(f"s_waitcnt vmcnt({waits[u]}) lgkmcnt(0)")
        mfma(a, 0, par, j + 0, u)
        mfma(a, 1, par, j + 1, u)
        a("s_barrier")
        b_read(a, u + 1)
        mfma(a, 2, par, j + 2, u)
        mfma(a, 3, par, j + 3, u)
        if u == 30 - NSLOT:
            a(f"s_cmp_eq_u32 s{S_IT}, 3")
            a(f"s_cselect_b32 s{SRD_W+2}, 0, s{SRD_W+2}")
        w_dma(a, u + NSLOT)
        mfma(a, 4, par, j + 4, u)
        rd = A_SCHED[sig]
        buf = (srel + (1 if sig >= XSW else 0)) & 1
        a_read(a, rd[0][0], rd[0][1], buf)
        mfma(a, 5, par, j + 5, u)
        if len(rd) > 1:
            a_read(a, rd[1][0], rd[1][1], buf)
        mfma(a, 6, par, j + 6, u)
        if u == XSW:
            a(f"s_cmp_eq_u32 s{S_IT}, 3")
            a(f"s_cselect_b32 s{SRD_X+2}, 0, s{SRD_X+2}")
        if sig in X_SCHED:
            x_dma(a, srel + X_SCHED[sig][0], X_SCHED[sig][1])
        mfma(a, 7, par, j + 7, u)
    a(f"s_add_u32 s{S_ITW}, s{S_ITW}, 2")
    stage_regs(a)
    a(f"s_add_u32 s{S_IT}, s{S_IT}, 1")
    a(f"s_cmp_lt_u32 s{S_IT}, 4")
    a("s_cbranch_scc1 L_loop")

    a.c("epilogue")
    stamp(a, 3)
    P = V_E
    Y = V_E + 16
    T = V_E + 32
    VS, VM2 = V_O, V_O + 1
    U0, U1, U2, U3 = V_O + 2, V_O + 3, V_O + 4, V_O + 5
    U4, U5 = V_O + 6, V_O + 7
    ST = V_O + 8
    VG, VBE = V_O + 40, V_O + 41
    a(f"s_lshl_b32 s{S_T0}, s{S_NQ}, 13")
    a(f"s_lshl_b32 s{S_T1}, s{S_KH}, 12")
    a(f"s_add_u32 s{S_T2}, s{S_T0}, s{S_T1}")
    a(f"s_add_u32 s{S_T2}, s{S_T2}, {L_EX}")
    a(f"s_xor_b32 s{S_T3}, s{S_T2}, 4096")
    a(f"v_lshl_add_u32 v{V_T0}, v{V_LANE}, 4, s{S_T3}")
    a(f"v_lshl_add_u32 v{V_T1}, v{V_LANE}, 4, s{S_T2}")
    make_srd(a, SRD_WS, S_WS, WS_BYTES)
    make_srd(a, SRD_OUT, S_OUT, OUT_BYTES)
    make_srd(a, SRD_DBG, S_DBG, 256)
    a(f"s_movk_i32 s{S_NVAL}, 128")
    a(f"s_sub_u32 s{S_T0}, 37, s{S_KH}")
    a(f"s_cmp_eq_u32 s{S_MT}, 15")
    a(f"s_cselect_b32 s{S_NVAL}, 73, s{S_NVAL}")
    a(f"s_cselect_b32 s{S_CNT}, s{S_T0}, 64")
    a("s_waitcnt vmcnt(0) lgkmcnt(0)")
    a("s_barrier")
    a(f"s_cmp_eq_u32 s{S_KH}, 0")
    a("s_cbranch_scc0 L_ex1")
    for f in range(4):
        a(f"ds_write_b128 v{V_T0}, {vr(V_ACC+16+4*f,4)} offset:{f*1024}")
    a("s_branch L_ex2")
    a.label("L_ex1")
    for f in range(4):
        a(f"ds_write_b128 v{V_T0}, {vr(V_ACC+4*f,4)} offset:{f*1024}")
    a("s_nop 1")
    for v in range(16):
        a(f"v_mov_b32 v{V_ACC+v}, v{V_ACC+16+v}")
    a.label("L_ex2")
    a(f"v_lshrrev_b32 v{V_T2}, 4, v{V_LANE}")
    a(f"v_lshlrev_b32 v{V_T2}, 5, v{V_T2}")
    a(f"s_lshl_b32 s{S_T0}, s{S_KH}, 2")
    a(f"v_add_u32 v{V_T2}, s{S_T0}, v{V_T2}")
    for v in range(16):
        f1, r = v >> 2, v & 3
        a(f"s_sub_i32 s{S_T0}, s{S_NVAL}, {8*r+f1}")
        a(f"v_cmp_gt_i32 {sr(MASKS[v],2)}, s{S_T0}, v{V_T2}")
    a(f"v_lshlrev_b32 v{V_BIAS}, 16, v{V_BIAS}")
    a(f"v_and_b32 v{U0}, 15, v{V_LANE}")
    a(f"s_lshl_b32 s{S_T0}, s{S_NQ}, 6")
    a(f"s_add_u32 s{S_T0}, s{S_T0}, {L_YT}")
    a(f"v_lshl_add_u32 v{U1}, v{U0}, 2, s{S_T0}")
    a(f"v_lshl_add_u32 v{U1}, v{V_T2}, 8, v{U1}")
    a(f"s_lshl_b32 s{S_T0}, s{S_KH}, 9")
    a(f"s_lshl_b32 s{S_T1}, s{S_NQ}, 7")
    a(f"s_add_u32 s{S_T0}, s{S_T0}, s{S_T1}")
    a(f"s_add_u32 s{S_T0}, s{S_T0}, {L_ST}")
    a(f"v_lshl_add_u32 v{U2}, v{U0}, 3, s{S_T0}")
    a(f"v_cvt_f32_u32 v{U3}, s{S_CNT}")
    a(f"v_rcp_f32 v{U3}, v{U3}")
    a("s_waitcnt lgkmcnt(0)")
    a("s_barrier")
    for f in range(4):
        a(f"ds_read_b128 {vr(P+4*f,4)}, v{V_T1} offset:{f*1024}")
    for v in range(16):
        a(f"v_add_f32 v{Y+v}, v{V_ACC+v}, v{V_BIAS}")
    a("s_waitcnt lgkmcnt(0)")
    for v in range(16):
        a(f"v_add_f32 v{Y+v}, v{Y+v}, v{P+v}")
    for v in range(16):
        a(f"v_cndmask_b32 v{T+v}, 0, v{Y+v}, {sr(MASKS[v],2)}")
    for st in (8, 4, 2):
        for v in range(st):
            a(f"v_add_f32 v{T+v}, v{T+v}, v{T+v+st}")
    a(f"v_add_f32 v{VS}, v{T}, v{T+1}")
    cross4_sum(a, VS, U4, U5)
    a(f"v_mul_f32 v{U3}, v{VS}, v{U3}")
    for v in range(16):
        a(f"v_sub_f32 v{T+v}, v{Y+v}, v{U3}")
    for v in range(16):
        a(f"v_cndmask_b32 v{T+v}, 0, v{T+v}, {sr(MASKS[v],2)}")
    for v in range(8):
        a(f"v_mul_f32 v{T+v}, v{T+v}, v{T+v}")
    for v in range(8):
        a(f"v_fmac_f32 v{T+v}, v{T+8+v}, v{T+8+v}")
    for st in (4, 2):
        for v in range(st):
            a(f"v_add_f32 v{T+v}, v{T+v}, v{T+v+st}")
    a(f"v_add_f32 v{VM2}, v{T}, v{T+1}")
    cross4_sum(a, VM2, U4, U5)
    a(f"ds_write_b64 v{U2}, {vr(VS,2)}")
    for v in range(16):
        f1, r = v >> 2, v & 3
        a(f"ds_write_b32 v{U1}, v{Y+v} offset:{(8*r+f1)*256}")
    a(f"v_lshrrev_b32 v{U0}, 3, v{V_LANE}")
    a(f"v_and_b32 v{U1}, 7, v{V_LANE}")
    a(f"s_lshl_b32 s{S_T0}, s{S_WAVE}, 12")
    a(f"s_add_u32 s{S_T0}, s{S_T0}, {L_YT}")
    a(f"v_lshl_add_u32 v{U2}, v{U0}, 8, s{S_T0}")
    a(f"v_lshl_add_u32 v{U2}, v{U1}, 5, v{U2}")
    a(f"s_lshl_b32 s{S_T0}, s{S_WAVE}, 4")
    a(f"s_lshl_b32 s{S_T1}, s{S_MT}, 7")
    a(f"s_add_u32 s{S_T0}, s{S_T0}, s{S_T1}")
    a(f"v_add_u32 v{U0}, s{S_T0}, v{U0}")
    a(f"v_add_u32 v{U3}, 8, v{U0}")
    a(f"s_mul_i32 s{S_T0}, s{S_B}, 2040832")
    a(f"s_lshl_b32 s{S_T1}, s{S_NT}, 7")
    a(f"s_add_u32 s{S_T0}, s{S_T0}, s{S_T1}")
    a(f"v_lshl_add_u32 v{U4}, v{U1}, 4, s{S_T0}")
    a(f"v_lshl_add_u32 v{V_T0}, v{U0}, 10, v{U4}")
    a(f"v_lshl_add_u32 v{V_T1}, v{U3}, 10, v{U4}")
    a(f"v_mov_b32 v{U4}, 0x7f000000")
    a(f"s_movk_i32 s{S_T0}, 1993")
    a(f"v_cmp_gt_u32 vcc, s{S_T0}, v{U0}")
    a(f"v_cmp_gt_u32 {sr(MASKS[0],2)}, s{S_T0}, v{U3}")
    a(f"v_lshlrev_b32 v{U1}, 5, v{U1}")
    a(f"v_cndmask_b32 v{V_T0}, v{U4}, v{V_T0}, vcc")
    a(f"v_cndmask_b32 v{V_T1}, v{U4}, v{V_T1}, {sr(MASKS[0],2)}")
    a("s_waitcnt lgkmcnt(0)")
    a("s_barrier")
    Z = V_E
    for i2 in range(2):
        for half in range(2):
            a(f"ds_read_b128 {vr(Z+8*i2+4*half,4)}, v{U2} offset:{i2*2048+half*16}")
    a(f"s_cmp_lg_u32 s{S_WAVE}, 0")
    a("s_cbranch_scc1 L_wait")
    a(f"v_lshlrev_b32 v{U0}, 3, v{V_LANE}")
    a(f"ds_read_b64 {vr(T,2)}, v{U0} offset:{L_ST}")
    a(f"ds_read_b64 {vr(T+2,2)}, v{U0} offset:{L_ST+512}")
    a(f"s_cmp_eq_u32 s{S_MT}, 15")
    a(f"s_cselect_b32 s{S_T0}, 37, 64")
    a(f"s_cselect_b32 s{S_T1}, 36, 64")
    a(f"v_cvt_f32_u32 v{T+4}, s{S_T0}")
    a(f"v_cvt_f32_u32 v{T+5}, s{S_T1}")
    a(f"v_cvt_f32_u32 v{T+6}, s{S_NVAL}")
    a(f"v_rcp_f32 v{T+7}, v{T+4}")
    a(f"v_rcp_f32 v{T+8}, v{T+5}")
    a(f"v_rcp_f32 v{T+9}, v{T+6}")
    a(f"s_lshl_b32 s{S_T0}, s{S_GRP}, 13")
    a(f"s_lshl_b32 s{S_T1}, s{S_MT}, 9")
    a(f"s_add_u32 s{S_T1}, s{S_T1}, s{S_T0}")
    a(f"v_add_u32 v{U3}, s{S_T1}, v{U0}")
    a(f"v_add_u32 v{U4}, s{S_T0}, v{U0}")
    a("s_waitcnt lgkmcnt(0)")
    a(f"v_add_f32 v{VS}, v{T}, v{T+2}")
    a(f"v_mul_f32 v{T+9}, v{VS}, v{T+9}")
    a(f"v_add_f32 v{VM2}, v{T+1}, v{T+3}")
    a(f"v_fma_f32 v{T+10}, v{T}, v{T+7}, -v{T+9}")
    a(f"v_fma_f32 v{T+11}, v{T+2}, v{T+8}, -v{T+9}")
    a(f"v_mul_f32 v{T+10}, v{T+10}, v{T+10}")
    a(f"v_mul_f32 v{T+11}, v{T+11}, v{T+11}")
    a(f"v_fmac_f32 v{VM2}, v{T+10}, v{T+4}")
    a(f"v_fmac_f32 v{VM2}, v{T+11}, v{T+5}")
    a(f"v_max_f32 v{VM2}, 0, v{VM2}")
    a(f"v_and_b32 v{VM2}, 0x7fffffff, v{VM2}")
    a(f"buffer_store_dwordx2 {vr(VS,2)}, v{U3}, {sr(SRD_WS,4)}, 0 offen sc1")
    a(f"s_lshl_b32 s{S_T0}, s{S_NT}, 7")
    a(f"v_lshl_add_u32 v{U5}, v{V_LANE}, 1, s{S_T0}")
    make_srd(a, SRD_P, S_GA, 1024)
    a(f"buffer_load_ushort v{VG}, v{U5}, {sr(SRD_P,4)}, 0 offen")
    make_srd(a, SRD_P, S_BE, 1024)
    a(f"buffer_load_ushort v{VBE}, v{U5}, {sr(SRD_P,4)}, 0 offen")
    a(f"s_lshl_b32 s{S_T0}, s{S_GRP}, 2")
    a(f"v_mov_b32 v{U5}, s{S_T0}")
    a(f"s_mov_b32 s{S_T2}, 0")
    a.label("L_pollA")
    a(f"buffer_load_dword v{T}, v{U5}, {sr(SRD_DBG,4)}, 0 offen sc1")
    a("s_waitcnt vmcnt(0)")
    a(f"v_readfirstlane_b32 s{S_T1}, v{T}")
    a(f"s_add_u32 s{S_T2}, s{S_T2}, 1")
    a(f"s_cmp_ge_u32 s{S_T1}, 16")
    a("s_cbranch_scc1 L_pollB")
    a(f"s_cmp_lt_u32 s{S_T2}, 0x400000")
    a("s_cbranch_scc1 L_pollA")
    a.label("L_pollB")
    a(f"s_movk_i32 s{S_T3}, 4096")
    for i in range(16):
        so = "0" if i < 8 else f"s{S_T3}"
        a(f"buffer_load_dwordx2 {vr(ST+2*i,2)}, v{U4}, {sr(SRD_WS,4)}, {so} offen offset:{(i%8)*512} sc1")
    a("s_waitcnt vmcnt(0)")
    a(f"v_or3_b32 v{T}, v{ST+1}, v{ST+3}, v{ST+5}")
    a(f"v_or3_b32 v{T+1}, v{ST+7}, v{ST+9}, v{ST+11}")
    a(f"v_or3_b32 v{T+2}, v{ST+13}, v{ST+15}, v{ST+17}")
    a(f"v_or3_b32 v{T+3}, v{ST+19}, v{ST+21}, v{ST+23}")
    a(f"v_or3_b32 v{T+4}, v{ST+25}, v{ST+27}, v{ST+29}")
    a(f"v_or3_b32 v{T}, v{T}, v{T+1}, v{ST+31}")
    a(f"v_or3_b32 v{T+2}, v{T+2}, v{T+3}, v{T+4}")
    a(f"v_or_b32 v{T}, v{T}, v{T+2}")
    a(f"v_cmp_gt_i32 vcc, 0, v{T}")
    a(f"s_add_u32 s{S_T2}, s{S_T2}, 1")
    a("s_nop 3")
    a("s_cbranch_vccz L_got")
    a(f"s_cmp_lt_u32 s{S_T2}, 0x400000")
    a("s_cbranch_scc1 L_pollB")
    a.label("L_got")
    stamp(a, 4)
    for i in range(8):
        a(f"v_add_f32 v{T+i}, v{ST+2*i}, v{ST+2*i+16}")
    for st in (4, 2, 1):
        for v in range(st):
            a(f"v_add_f32 v{T+v}, v{T+v}, v{T+v+st}")
    a(f"v_mul_f32 v{T}, {f2u(1.0/1993.0):#x}, v{T}")
    for i in range(8):
        a(f"v_add_f32 v{T+8+i}, v{ST+2*i+1}, v{ST+2*i+17}")
    for st in (4, 2, 1):
        for v in range(st):
            a(f"v_add_f32 v{T+8+v}, v{T+8+v}, v{T+8+v+st}")
    a(f"s_mov_b32 s{S_T0}, {f2u(1.0/128.0):#x}")
    a(f"s_mov_b32 s{S_T1}, {f2u(1.0/73.0):#x}")
    for i in range(16):
        a(f"v_fma_f32 v{ST+2*i}, v{ST+2*i}, s{S_T0 if i < 15 else S_T1}, -v{T}")
    for i in range(16):
        a(f"v_mul_f32 v{ST+2*i}, v{ST+2*i}, v{ST+2*i}")
    a(f"v_mul_f32 v{ST+30}, {f2u(73.0/128.0):#x}, v{ST+30}")
    for i in range(8):
        a(f"v_add_f32 v{ST+2*i}, v{ST+2*i}, v{ST+2*i+16}")
    for st in (4, 2, 1):
        for v in range(st):
            a(f"v_add_f32 v{ST+2*v}, v{ST+2*v}, v{ST+2*(v+st)}")
    a(f"v_fmac_f32 v{T+8}, 0x43000000, v{ST}")
    a(f"v_mov_b32 v{T+1}, {f2u(1e-5):#x}")
    a(f"v_fmac_f32 v{T+1}, {f2u(1.0/1993.0):#x}, v{T+8}")
    a(f"v_rsq_f32 v{T+1}, v{T+1}")
    a(f"v_lshlrev_b32 v{VG}, 16, v{VG}")
    a(f"v_lshlrev_b32 v{VBE}, 16, v{VBE}")
    a(f"v_lshlrev_b32 v{U0}, 2, v{V_LANE}")
    a(f"v_mul_f32 v{T+1}, v{T+1}, v{VG}")
    a(f"v_fma_f32 v{T+2}, -v{T}, v{T+1}, v{VBE}")
    a(f"ds_write_b32 v{U0}, v{T+1} offset:{L_SC}")
    a(f"ds_write_b32 v{U0}, v{T+2} offset:{L_SH}")
    a.label("L_wait")
    a("s_waitcnt lgkmcnt(0)")
    a("s_barrier")
    SC, SH, E = V_E + 16, V_E + 24, V_E + 32
    a(f"ds_read_b128 {vr(SC,4)}, v{U1} offset:{L_SC}")
    a(f"ds_read_b128 {vr(SC+4,4)}, v{U1} offset:{L_SC+16}")
    a(f"ds_read_b128 {vr(SH,4)}, v{U1} offset:{L_SH}")
    a(f"ds_read_b128 {vr(SH+4,4)}, v{U1} offset:{L_SH+16}")
    k0 = math.sqrt(2.0 / math.pi)
    c0 = -2.0 * k0 * math.log2(math.e)
    c1 = c0 * 0.044715
    a(f"s_mov_b32 s{S_T0}, {f2u(c1):#x}")
    a(f"v_mov_b32 v{U0}, {f2u(c0):#x}")
    a("s_waitcnt lgkmcnt(0)")
    for v in range(16):
        a(f"v_fma_f32 v{Z+v}, v{Z+v}, v{SC+(v&7)}, v{SH+(v&7)}")
    for v in range(16):
        a(f"v_mul_f32 v{E+v}, v{Z+v}, v{Z+v}")
    for v in range(16):
        a(f"v_fma_f32 v{E+v}, v{E+v}, s{S_T0}, v{U0}")
    for v in range(16):
        a(f"v_mul_f32 v{E+v}, v{E+v}, v{Z+v}")
    for v in range(16):
        a(f"v_exp_f32 v{E+v}, v{E+v}")
    for v in range(16):
        a(f"v_add_f32 v{E+v}, 1.0, v{E+v}")
    for v in range(16):
        a(f"v_rcp_f32 v{E+v}, v{E+v}")
    for v in range(16):
        a(f"v_mul_f32 v{Z+v}, v{Z+v}, v{E+v}")
    for v in range(8):
        a(f"v_cvt_pk_bf16_f32 v{E+v}, v{Z+2*v}, v{Z+2*v+1}")
    a(f"buffer_store_dwordx4 {vr(E,4)}, v{V_T0}, {sr(SRD_OUT,4)}, 0 offen")
    a(f"buffer_store_dwordx4 {vr(E+4,4)}, v{V_T1}, {sr(SRD_OUT,4)}, 0 offen")
    if DIAG:
        a(f"s_cmp_lg_u32 s{S_WAVE}, 0")
        a("s_cbranch_scc1 L_end")
        a("s_waitcnt vmcnt(0)")
        stamp(a, 5, True)
        a("s_waitcnt lgkmcnt(0)")
        a(f"s_lshl_b32 s{S_T0}, s2, 6")
        a(f"s_add_u32 s{S_T0}, s{S_T0}, 0x1000000")
        a(f"v_mov_b32 v{V_T0}, s{S_T0}")
        for i in range(6):
            a(f"v_mov_b32 v{V_T1}, s{STAMPS[i]}")
            a(f"buffer_store_dword v{V_T1}, v{V_T0}, {sr(SRD_WS,4)}, 0 offen offset:{4*i}")
    a.label("L_end")
    a("s_endpgm")

    a.label("L_helper")
    a("s_waitcnt lgkmcnt(0)")
    make_srd(a, SRD_WS, S_WS, WS_BYTES)
    make_srd(a, SRD_DBG, S_DBG, 256)
    make_srd(a, SRD_X, S_X, X_BYTES)
    make_srd(a, SRD_W, S_W, W_BYTES)
    a(f"s_lshl_b32 s{S_T0}, s{S_GRP}, 13")
    a(f"s_lshl_b32 s{S_T1}, s{S_MT}, 9")
    a(f"s_add_u32 s{S_T1}, s{S_T1}, s{S_T0}")
    a(f"v_lshl_add_u32 v{V_T0}, v{V_LANE}, 3, s{S_T1}")
    a("v_mov_b32 v12, 0")
    a("v_mov_b32 v13, -1.0")
    a(f"buffer_store_dwordx2 v[12:13], v{V_T0}, {sr(SRD_WS,4)}, 0 offen sc1")
    nld = 0
    a(f"s_lshl_b32 s{S_T2}, s{S_GRP}, 2")
    a(f"v_mov_b32 v16, s{S_T2}")
    a("v_mov_b32 v17, 1")
    a(f"v_mov_b32 v{V_T2}, 0x7f000000")
    if TOUCH and not TFULL:
        a(f"v_lshlrev_b32 v{V_T1}, 10, v{V_LANE}")
        a(f"v_add_u32 v{V_T1}, 384, v{V_T1}")
        a(f"s_mul_i32 s{S_T0}, s2, {32*1024}")
        a(f"s_mul_i32 s{S_T1}, s2, {30*1024}")
        a(f"v_cmp_gt_u32 vcc, 32, v{V_LANE}")
        a(f"v_cmp_gt_u32 s[72:73], 30, v{V_LANE}")
        a("s_nop 1")
        a(f"v_cndmask_b32 v14, v{V_T2}, v{V_T1}, vcc")
        a(f"v_cndmask_b32 v15, v{V_T2}, v{V_T1}, s[72:73]")
        a(f"buffer_load_dword v20, v15, {sr(SRD_W,4)}, s{S_T1} offen")
        a(f"buffer_load_dword v21, v14, {sr(SRD_X,4)}, s{S_T0} offen")
        nld = 2
    nbar = 0
    if TOUCH and TFULL:
        a(f"v_lshlrev_b32 v{V_T1}, 7, v{V_LANE}")
        a(f"s_mul_i32 s{S_T0}, s2, {250*128}")
        a(f"s_mul_i32 s{S_T1}, s2, {240*128}")
        a(f"v_cmp_gt_u32 vcc, 58, v{V_LANE}")
        a(f"v_cmp_gt_u32 s[72:73], 48, v{V_LANE}")
        a("s_nop 1")
        a(f"v_cndmask_b32 v14, v{V_T2}, v{V_T1}, vcc")
        a(f"v_cndmask_b32 v15, v{V_T2}, v{V_T1}, s[72:73]")
        for _ in range(TPRE):
            a("s_barrier")
            nbar += 1
        for i in range(4):
            a(f"buffer_load_dword v{20+i}, v{V_T1 if i < 3 else 15}, {sr(SRD_W,4)}, s{S_T1} offen")
            a(f"s_add_u32 s{S_T1}, s{S_T1}, 8192")
            for _ in range(TPACE):
                a("s_barrier")
                nbar += 1
            a(f"buffer_load_dword v{24+i}, v{V_T1 if i < 3 else 14}, {sr(SRD_X,4)}, s{S_T0} offen")
            a(f"s_add_u32 s{S_T0}, s{S_T0}, 8192")
            for _ in range(TPACE):
                a("s_barrier")
                nbar += 1
        nld = 8
    while nbar < 4:
        a("s_barrier")
        nbar += 1
    a(f"v_cmp_eq_u32 vcc, 0, v{V_LANE}")
    a(f"s_waitcnt vmcnt({nld})")
    a("s_and_saveexec_b64 s[74:75], vcc")
    a(f"buffer_atomic_add v17, v16, {sr(SRD_DBG,4)}, 0 offen sc1")
    a("s_mov_b64 exec, s[74:75]")
    a(f"s_mov_b32 s{S_T0}, 0")
    a.label("L_hloop")
    a("s_barrier")
    a(f"s_add_u32 s{S_T0}, s{S_T0}, 1")
    a(f"s_cmp_lt_u32 s{S_T0}, 30")
    a("s_cbranch_scc1 L_hloop")
    a("s_waitcnt vmcnt(0)")
    a("s_endpgm")


def kd(name, nvgpr):
    acc = (nvgpr + 3) // 4 * 4
    return f""".p2align 6
.amdhsa_kernel {name}
  .amdhsa_next_free_vgpr {nvgpr}
  .amdhsa_next_free_sgpr 102
  .amdhsa_accum_offset {acc}
  .amdhsa_group_segment_fixed_size 0
  .amdhsa_kernarg_size 64
  .amdhsa_user_sgpr_count 2
  .amdhsa_user_sgpr_kernarg_segment_ptr 1
  .amdhsa_system_sgpr_workgroup_id_x 1
  .amdhsa_float_denorm_mode_32 3
.end_amdhsa_kernel
"""


def main():
    args = [x for x in ARGS if not x.startswith("-")]
    out = args[0] if args else f"cdna_kernels/{NAME}.s"
    hdr = f"""; conv stem (HuBERT): conv1d(k=15,s=2) as implicit GEMM + per-channel norm over time + GELU, one fused kernel
; @launch grid=(256,1,1) block=(576,1,1) lds={LDS1}
.amdgcn_target "amdgcn-amd-amdhsa--gfx950"
.text
"""
    a = Asm()
    gen_kernel(a)
    txt = hdr + a.text() + '.section .rodata,"a"\n' + kd(NAME + "_kernel", NVGPR)
    open(out, "w").write(txt)


if __name__ == "__main__":
    main()
```

```python
import sys
import struct
import math

NAME = "standalone__self_sup_conv_stem_hubert__speech"
ARGS = sys.argv[1:]
DIAG = "--diag" in ARGS
DIAGE = "--diage" in ARGS
NPRE = 3
for _a in ARGS:
    if _a.startswith("--npre="):
        NPRE = int(_a[7:])

X_BYTES = 2 * 4000 * 512 * 2
W_BYTES = 15 * 512 * 512 * 2
OUT_BYTES = 2 * 1993 * 512 * 2
WS_BYTES = 268435456
XBLK = 1040
XBUF = 34 * XBLK
WRING = 2 * XBUF
NSLOT = 10
LDS1 = WRING + NSLOT * 8192
L_ST, L_SC, L_SH, L_EX, L_YT = 0, 1024, 1280, 2048, XBUF


def f2u(x):
    return struct.unpack("<I", struct.pack("<f", x))[0]


class Asm:
    def __init__(self):
        self.lines = []

    def __call__(self, s):
        self.lines.append("    " + s)

    def label(self, l):
        self.lines.append(l + ":")

    def c(self, s):
        self.lines.append("    ; " + s)

    def text(self):
        return "\n".join(self.lines) + "\n"


def vr(a, n=1):
    return f"v{a}" if n == 1 else f"v[{a}:{a+n-1}]"


def sr(a, n=1):
    return f"s{a}" if n == 1 else f"s[{a}:{a+n-1}]"


V_GB = 0
V_LANE, V_T0, V_T1, V_T2 = 1, 2, 3, 4
V_BADDR2, V_AADDR, V_BADDR, V_WOFF, V_XOFF, V_BIAS, V_XOFF5 = 5, 6, 7, 8, 9, 10, 11
V_E = 12
V_O = 72
V_B = 128
V_ACC = 136
NVGPR = 168

S_X, S_W, S_BI, S_GA = 4, 6, 8, 10
S_BE, S_OUT, S_DBG, S_WS = 12, 14, 16, 18
SRD_X, SRD_W, SRD_WS, SRD_P = 20, 24, 28, 32
SRD_OUT, SRD_DBG = 36, 40
S_K, S_Q, S_B, S_NT, S_MT = 44, 45, 46, 47, 48
S_WAVE, S_KH, S_NQ, S_WM0, S_XM0, S_XM05 = 49, 50, 51, 52, 53, 54
S_ITW, S_IT, S_T0, S_T1, S_T2, S_T3 = 55, 56, 57, 58, 59, 60
S_SW = 61
S_SX = 65
S_NVAL, S_CNT, S_GRP = 69, 70, 71
MASKS = list(range(4, 20, 2)) + list(range(72, 88, 2))
S_WV = 88
STAMPS = [90, 92, 94, 96, 98, 100]


def stampe(a, i):
    if DIAGE:
        a(f"s_memtime s[{STAMPS[i]}:{STAMPS[i]+1}]")


def stamp(a, i, rt=False):
    if DIAG and (rt or not DIAGE):
        a(f"s_mem{'real' if rt else ''}time s[{STAMPS[i]}:{STAMPS[i]+1}]")


def frag(par, g):
    return (V_E if par == 0 else V_O) + 4 * g


def tap_of(sig):
    return 2 * sig if sig < 8 else 2 * (sig - 8) + 1


def make_srd(a, srd, base, nbytes):
    a(f"s_mov_b32 s{srd}, s{base}")
    a(f"s_and_b32 s{srd+1}, s{base+1}, 0xffff")
    a(f"s_mov_b32 s{srd+2}, {nbytes}")
    a(f"s_mov_b32 s{srd+3}, 0x00020000")


class VQ:
    def __init__(self):
        self.q = []
        self.waited = -1

    def issue(self, tag):
        self.q.append(tag)

    def need(self, tags):
        idx = [self.q.index(t) for t in tags if t in self.q]
        if not idx:
            return None
        return len(self.q) - 1 - max(idx)


XSW = 11
_seq = [(0, g) for g in range(15)] + [(1, g) for g in range(14)]
A_SCHED = {}
_order = [11, 12, 13, 14, 0, 1, 2, 3, 4, 5, 6, 7, 8, 9, 10]
for _i, _sig in enumerate(_order):
    A_SCHED[_sig] = _seq[2 * _i: 2 * _i + 2]
X_SCHED = {11: (2, 0), 12: (2, 1), 13: (2, 2), 14: (2, 3), 0: (1, 4)}


def stage_regs(a):
    for rel in range(4):
        a(f"s_add_u32 s{S_T0}, s{S_ITW}, {rel}")
        a(f"s_and_b32 s{S_T0}, s{S_T0}, 7")
        a(f"s_lshl_b32 s{S_SW+rel}, s{S_T0}, 16")
        a(f"s_lshl_b32 s{S_SX+rel}, s{S_T0}, 7")


def a_read(a, par, g, buf):
    e = 2 * g + par
    off = buf * XBUF + (e >> 3) * XBLK + (e & 7) * 128
    a(f"ds_read_b128 {vr(frag(par, g), 4)}, v{V_AADDR} offset:{off}")


def b_read(a, t):
    slot = t % NSLOT
    b = V_B + 4 * (t & 1)
    va, sl = (V_BADDR, slot) if slot < 5 else (V_BADDR2, slot - 5)
    a(f"ds_read_b64_tr_b16 {vr(b, 2)}, v{va} offset:{sl*8192}")
    a(f"ds_read_b64_tr_b16 {vr(b+2, 2)}, v{va} offset:{sl*8192+512}")


def w_dma(a, trel):
    slot = trel % NSLOT
    srel, sig = trel // 15, trel % 15
    a(f"s_add_u32 m0, s{S_WM0}, {slot*8192}")
    a(f"s_add_u32 s{S_T0}, s{S_SW+srel}, {tap_of(sig) * 524288}")
    a(f"buffer_load_dwordx4 v{V_WOFF}, {sr(SRD_W,4)}, s{S_T0} offen lds")


def x_dma(a, srel, j):
    buf = srel & 1
    if j < 4:
        a(f"s_add_u32 m0, s{S_XM0}, {buf*XBUF + j*8*XBLK}")
        a(f"s_add_u32 s{S_T1}, s{S_SX+srel}, {j*65536}")
        a(f"buffer_load_dwordx4 v{V_XOFF}, {sr(SRD_X,4)}, s{S_T1} offen lds")
    else:
        a(f"s_add_u32 m0, s{S_XM05}, {buf*XBUF}")
        a(f"s_mov_b32 s{S_T1}, s{S_SX+srel}")
        a(f"buffer_load_dwordx4 v{V_XOFF5}, {sr(SRD_X,4)}, s{S_T1} offen lds")


def mfma(a, f, par, g, t):
    acc = V_ACC + 4 * f
    b = V_B + 4 * (t & 1)
    a(f"v_mfma_f32_16x16x32_bf16 {vr(acc,4)}, {vr(frag(par,g),4)}, {vr(b,4)}, {vr(acc,4)}")


def cross4_sum(a, v, t0, t1):
    a(f"v_mov_b32 v{t0}, v{v}")
    a(f"v_mov_b32 v{t1}, v{v}")
    a("s_nop 1")
    a(f"v_permlane32_swap_b32 v{t0}, v{t1}")
    a("s_nop 1")
    a(f"v_add_f32 v{v}, v{t0}, v{t1}")
    a(f"v_mov_b32 v{t0}, v{v}")
    a(f"v_mov_b32 v{t1}, v{v}")
    a("s_nop 1")
    a(f"v_permlane16_swap_b32 v{t0}, v{t1}")
    a("s_nop 1")
    a(f"v_add_f32 v{v}, v{t0}, v{t1}")


def pk(a, op, d, s0, s1, s2=None, mods=""):
    ops = f"{vr(d,2)}, {vr(s0,2)}, {vr(s1,2)}" + (f", {vr(s2,2)}" if s2 is not None else "")
    a(f"v_pk_{op}_f32 {ops} {mods}".rstrip())


def gen_kernel(a):
    kname = NAME + "_kernel"
    a.lines.append(f".globl {kname}")
    a.lines.append(".p2align 8")
    a.lines.append(f".type {kname},@function")
    a.label(kname)
    a("s_cmp_ge_u32 s2, 256")
    a("s_cbranch_scc1 L_end")
    stamp(a, 0, True)
    stamp(a, 1)
    a(f"s_load_dwordx16 {sr(S_X,16)}, s[0:1], 0")
    a(f"v_lshrrev_b32 v{V_T0}, 6, v0")
    a(f"v_and_b32 v{V_LANE}, 63, v0")
    a(f"v_readfirstlane_b32 s{S_WAVE}, v{V_T0}")
    a(f"s_and_b32 s{S_K}, s2, 7")
    a(f"s_lshr_b32 s{S_Q}, s2, 3")
    a(f"s_lshr_b32 s{S_B}, s{S_K}, 2")
    a(f"s_and_b32 s{S_NT}, s{S_K}, 3")
    a(f"s_lshl_b32 s{S_NT}, s{S_NT}, 1")
    a(f"s_lshr_b32 s{S_T0}, s{S_Q}, 4")
    a(f"s_add_u32 s{S_NT}, s{S_NT}, s{S_T0}")
    a(f"s_and_b32 s{S_MT}, s{S_Q}, 15")
    a(f"s_and_b32 s{S_WV}, s{S_WAVE}, 7")
    a(f"v_lshrrev_b32 v{V_T0}, 3, v{V_LANE}")
    a(f"v_and_b32 v{V_T1}, 7, v{V_LANE}")
    a(f"v_lshlrev_b32 v{V_T2}, 10, v{V_T0}")
    a(f"v_lshl_add_u32 v{V_T2}, v{V_T1}, 4, v{V_T2}")
    a(f"s_lshl_b32 s{S_T0}, s{S_WV}, 13")
    a(f"v_add_u32 v{V_XOFF}, s{S_T0}, v{V_T2}")
    a(f"s_and_b32 s{S_T1}, s{S_WV}, 1")
    a(f"s_add_u32 s{S_T2}, s{S_T1}, 32")
    a(f"s_lshl_b32 s{S_T3}, s{S_T2}, 13")
    a(f"v_add_u32 v{V_XOFF5}, s{S_T3}, v{V_T2}")
    a(f"s_mul_i32 s{S_XM05}, s{S_T2}, {XBLK}")
    a(f"s_mul_i32 s{S_XM0}, s{S_WV}, {XBLK}")
    a(f"v_bfe_u32 v{V_T2}, v{V_LANE}, 4, 1")
    a(f"s_lshl_b32 s{S_T1}, s{S_T1}, 1")
    a(f"v_or_b32 v{V_T2}, s{S_T1}, v{V_T2}")
    a(f"v_lshlrev_b32 v{V_T2}, 1, v{V_T2}")
    a(f"v_xor_b32 v{V_T2}, v{V_T2}, v{V_T1}")
    a(f"v_lshlrev_b32 v{V_WOFF}, 10, v{V_T0}")
    a(f"v_lshl_add_u32 v{V_WOFF}, v{V_T2}, 4, v{V_WOFF}")
    a(f"s_lshl_b32 s{S_T1}, s{S_NT}, 7")
    a(f"s_add_u32 s{S_T1}, s{S_T1}, s{S_T0}")
    a(f"v_add_u32 v{V_WOFF}, s{S_T1}, v{V_WOFF}")
    a(f"s_lshl_b32 s{S_WM0}, s{S_WV}, 10")
    a(f"s_add_u32 s{S_WM0}, s{S_WM0}, {WRING}")
    a(f"s_mov_b32 s{S_ITW}, s{S_K}")
    stage_regs(a)
    a(f"s_mul_i32 s{S_T0}, s{S_B}, 4096000")
    a(f"s_lshl_b32 s{S_T1}, s{S_MT}, 18")
    a(f"s_add_u32 s{S_T2}, s{S_T0}, s{S_T1}")
    a("s_waitcnt lgkmcnt(0)")
    a(f"s_add_u32 s{SRD_X}, s{S_X}, s{S_T2}")
    a(f"s_addc_u32 s{SRD_X+1}, s{S_X+1}, 0")
    a(f"s_and_b32 s{SRD_X+1}, s{SRD_X+1}, 0xffff")
    a(f"s_sub_u32 s{SRD_X+2}, 4096000, s{S_T1}")
    a(f"s_mov_b32 s{SRD_X+3}, 0x00020000")
    make_srd(a, SRD_W, S_W, W_BYTES)
    a(f"s_cmp_eq_u32 s{S_WAVE}, 8")
    a("s_cbranch_scc1 L_helper")

    q = VQ()
    for j in range(5):
        x_dma(a, 0, j)
        q.issue(('X', 0, j))
    for t in range(NPRE):
        w_dma(a, t)
        q.issue(('W', t))
    a(f"s_lshr_b32 s{S_KH}, s{S_WAVE}, 2")
    a(f"s_and_b32 s{S_NQ}, s{S_WAVE}, 3")
    a(f"s_lshl_b32 s{S_GRP}, s{S_B}, 3")
    a(f"s_add_u32 s{S_GRP}, s{S_GRP}, s{S_NT}")
    a(f"s_mov_b32 s{S_IT}, 0")
    a(f"v_and_b32 v{V_T0}, 15, v{V_LANE}")
    a(f"v_lshrrev_b32 v{V_T1}, 4, v{V_LANE}")
    make_srd(a, SRD_P, S_BI, 1024)
    a(f"s_lshl_b32 s{S_T0}, s{S_NT}, 7")
    a(f"s_lshl_b32 s{S_T1}, s{S_NQ}, 5")
    a(f"s_add_u32 s{S_T1}, s{S_T0}, s{S_T1}")
    a(f"v_lshl_add_u32 v{V_T2}, v{V_T0}, 1, s{S_T1}")
    a(f"buffer_load_ushort v{V_BIAS}, v{V_T2}, {sr(SRD_P,4)}, 0 offen")
    q.issue('bias')
    a(f"v_lshl_add_u32 v{V_T2}, v{V_LANE}, 1, s{S_T0}")
    make_srd(a, SRD_P, S_GA, 1024)
    a(f"buffer_load_ushort v{V_GB}, v{V_T2}, {sr(SRD_P,4)}, 0 offen")
    q.issue('gamma')
    make_srd(a, SRD_P, S_BE, 1024)
    a(f"v_mov_b32 v{V_B}, v{V_T2}")
    make_srd(a, SRD_WS, S_WS, WS_BYTES)
    make_srd(a, SRD_OUT, S_OUT, OUT_BYTES)
    make_srd(a, SRD_DBG, S_DBG, 256)
    a(f"v_mul_u32_u24 v{V_AADDR}, {2*XBLK}, v{V_T0}")
    a(f"s_lshl_b32 s{S_T0}, s{S_KH}, 2")
    a(f"v_add_u32 v{V_T2}, s{S_T0}, v{V_T1}")
    a(f"v_lshl_add_u32 v{V_AADDR}, v{V_T2}, 4, v{V_AADDR}")
    a(f"v_bfe_u32 v{V_T2}, v{V_LANE}, 2, 2")
    a(f"v_lshl_add_u32 v{V_BADDR}, v{V_T1}, 3, v{V_T2}")
    a(f"v_lshlrev_b32 v{V_BADDR}, 7, v{V_BADDR}")
    a(f"v_bfe_u32 v{V_T2}, v{V_LANE}, 3, 2")
    a(f"v_xor_b32 v{V_T2}, s{S_NQ}, v{V_T2}")
    a(f"v_lshl_add_u32 v{V_BADDR}, v{V_T2}, 5, v{V_BADDR}")
    a(f"v_and_b32 v{V_T2}, 3, v{V_LANE}")
    a(f"v_lshl_add_u32 v{V_BADDR}, v{V_T2}, 3, v{V_BADDR}")
    a(f"s_lshl_b32 s{S_T1}, s{S_KH}, 12")
    a(f"s_add_u32 s{S_T1}, s{S_T1}, {WRING}")
    a(f"v_add_u32 v{V_BADDR}, s{S_T1}, v{V_BADDR}")
    a(f"v_add_u32 v{V_BADDR2}, {5*8192}, v{V_BADDR}")
    a(f"s_movk_i32 s{S_NVAL}, 128")
    a(f"s_sub_u32 s{S_T1}, 37, s{S_KH}")
    a(f"s_cmp_eq_u32 s{S_MT}, 15")
    a(f"s_cselect_b32 s{S_NVAL}, 73, s{S_NVAL}")
    a(f"s_cselect_b32 s{S_CNT}, s{S_T1}, 64")
    a(f"v_lshl_add_u32 v{V_T2}, v{V_T1}, 5, s{S_T0}")
    for v in range(16):
        f1, r = v >> 2, v & 3
        a(f"s_sub_i32 s{S_T1}, s{S_NVAL}, {8*r+f1}")
        a(f"v_cmp_gt_i32 {sr(MASKS[v],2)}, s{S_T1}, v{V_T2}")
    a(f"s_lshl_b32 s{S_T0}, s{S_NQ}, 13")
    a(f"s_lshl_b32 s{S_T1}, s{S_KH}, 12")
    a(f"s_add_u32 s{S_T2}, s{S_T0}, s{S_T1}")
    a(f"s_add_u32 s{S_T2}, s{S_T2}, {L_EX}")
    a(f"s_xor_b32 s{S_T3}, s{S_T2}, 4096")
    a(f"v_lshl_add_u32 v{V_T0}, v{V_LANE}, 4, s{S_T3}")
    a(f"v_lshl_add_u32 v{V_T1}, v{V_LANE}, 4, s{S_T2}")
    a(f"buffer_load_ushort v{V_LANE}, v{V_B}, {sr(SRD_P,4)}, 0 offen")
    q.issue('beta')
    for i in range(32):
        a(f"v_mov_b32 v{V_ACC+i}, 0")
    n = q.need([('X', 0, j) for j in range(5)] + [('W', t) for t in range(NPRE)])
    a(f"s_waitcnt vmcnt({n})")
    a("s_barrier")
    b_read(a, 0)
    for sig in range(XSW, 15):
        for (par, g) in A_SCHED[sig]:
            a_read(a, par, g, 0)

    waits = {}
    for it in range(4):
        for u in range(30):
            t = 30 * it + u
            s, sig = t // 15, t % 15
            need = [('W', t + 1)] if t + 1 >= NPRE else []
            if sig == XSW:
                need += [('X', s + 1, j) for j in range(5)]
            n = q.need(need)
            if n is not None:
                waits[u] = min(waits.get(u, 99), n)
            q.issue(('W', t + NSLOT))
            if sig in X_SCHED:
                q.issue(('X', s + X_SCHED[sig][0], X_SCHED[sig][1]))

    stamp(a, 2)
    a.label("L_loop")
    for u in range(30):
        srel, sig = u // 15, u % 15
        par, j = (0, sig) if sig < 8 else (1, sig - 8)
        a.c(f"step u={u} stage_rel={srel} sig={sig} tap={tap_of(sig)}")
        a(f"s_waitcnt vmcnt({waits[u]}) lgkmcnt(0)")
        mfma(a, 0, par, j + 0, u)
        mfma(a, 1, par, j + 1, u)
        a("s_barrier")
        b_read(a, u + 1)
        mfma(a, 2, par, j + 2, u)
        mfma(a, 3, par, j + 3, u)
        if u == 30 - NSLOT:
            a(f"s_cmp_eq_u32 s{S_IT}, 3")
            a(f"s_cselect_b32 s{SRD_W+2}, 0, s{SRD_W+2}")
        w_dma(a, u + NSLOT)
        mfma(a, 4, par, j + 4, u)
        rd = A_SCHED[sig]
        buf = (srel + (1 if sig >= XSW else 0)) & 1
        a_read(a, rd[0][0], rd[0][1], buf)
        mfma(a, 5, par, j + 5, u)
        if len(rd) > 1:
            a_read(a, rd[1][0], rd[1][1], buf)
        mfma(a, 6, par, j + 6, u)
        if u == XSW:
            a(f"s_cmp_eq_u32 s{S_IT}, 3")
            a(f"s_cselect_b32 s{SRD_X+2}, 0, s{SRD_X+2}")
        if sig in X_SCHED:
            x_dma(a, srel + X_SCHED[sig][0], X_SCHED[sig][1])
        mfma(a, 7, par, j + 7, u)
    a(f"s_add_u32 s{S_ITW}, s{S_ITW}, 2")
    stage_regs(a)
    a(f"s_add_u32 s{S_IT}, s{S_IT}, 1")
    a(f"s_cmp_lt_u32 s{S_IT}, 4")
    a("s_cbranch_scc1 L_loop")

    a.c("epilogue")
    stamp(a, 3)
    stampe(a, 1)
    P = V_E
    Y = V_E + 16
    T = V_E + 32
    VS, VM2 = V_O, V_O + 1
    U0, U1, U2, U3 = V_O + 2, V_O + 3, V_O + 4, V_O + 5
    U4, U5 = V_O + 6, V_O + 7
    ST = V_O + 8
    UM = V_O + 40
    OA0, OA1 = V_O + 42, V_O + 43
    a("s_waitcnt lgkmcnt(0)")
    a(f"s_cmp_eq_u32 s{S_KH}, 0")
    a("s_cbranch_scc0 L_ex1")
    for f in range(4):
        a(f"ds_write_b128 v{V_T0}, {vr(V_ACC+16+4*f,4)} offset:{f*1024}")
    a("s_branch L_ex2")
    a.label("L_ex1")
    for f in range(4):
        a(f"ds_write_b128 v{V_T0}, {vr(V_ACC+4*f,4)} offset:{f*1024}")
    a("s_nop 1")
    for v in range(16):
        a(f"v_mov_b32 v{V_ACC+v}, v{V_ACC+16+v}")
    a.label("L_ex2")
    a(f"v_lshl_or_b32 v{V_GB}, v{V_LANE}, 16, v{V_GB}")
    a(f"v_mbcnt_lo_u32_b32 v{V_LANE}, -1, 0")
    a(f"v_mbcnt_hi_u32_b32 v{V_LANE}, -1, v{V_LANE}")
    a(f"v_lshlrev_b32 v{V_BIAS}, 16, v{V_BIAS}")
    a(f"v_and_b32 v{U0}, 15, v{V_LANE}")
    a(f"s_lshl_b32 s{S_T0}, s{S_NQ}, 6")
    a(f"s_add_u32 s{S_T0}, s{S_T0}, {L_YT}")
    a(f"v_lshl_add_u32 v{U1}, v{U0}, 2, s{S_T0}")
    a(f"v_lshl_add_u32 v{U1}, v{V_T2}, 8, v{U1}")
    a(f"s_lshl_b32 s{S_T0}, s{S_KH}, 9")
    a(f"s_lshl_b32 s{S_T1}, s{S_NQ}, 7")
    a(f"s_add_u32 s{S_T0}, s{S_T0}, s{S_T1}")
    a(f"v_lshl_add_u32 v{U2}, v{U0}, 3, s{S_T0}")
    a(f"v_cvt_f32_u32 v{U3}, s{S_CNT}")
    a(f"v_rcp_f32 v{U3}, v{U3}")
    for v in range(0, 16, 2):
        pk(a, "add", Y + v, V_ACC + v, V_BIAS, mods="op_sel_hi:[1,0]")
    a("s_waitcnt vmcnt(0) lgkmcnt(0)")
    a("s_barrier")
    for f in range(4):
        a(f"ds_read_b128 {vr(P+4*f,4)}, v{V_T1} offset:{f*1024}")
    for f in range(4):
        a(f"s_waitcnt lgkmcnt({3-f})")
        pk(a, "add", Y + 4 * f, Y + 4 * f, P + 4 * f)
        pk(a, "add", Y + 4 * f + 2, Y + 4 * f + 2, P + 4 * f + 2)
    for v in range(16):
        a(f"v_cndmask_b32 v{T+v}, 0, v{Y+v}, {sr(MASKS[v],2)}")
    for st in (8, 4, 2):
        for v in range(0, st, 2):
            pk(a, "add", T + v, T + v, T + v + st)
    a(f"v_add_f32 v{VS}, v{T}, v{T+1}")
    cross4_sum(a, VS, U4, U5)
    a(f"v_mul_f32 v{UM}, v{VS}, v{U3}")
    for v in range(0, 16, 2):
        pk(a, "add", T + v, Y + v, UM, mods="op_sel_hi:[1,0] neg_lo:[0,1] neg_hi:[0,1]")
    for v in range(16):
        a(f"v_cndmask_b32 v{T+v}, 0, v{T+v}, {sr(MASKS[v],2)}")
    for v in range(0, 8, 2):
        pk(a, "mul", T + v, T + v, T + v)
    for v in range(0, 8, 2):
        pk(a, "fma", T + v, T + 8 + v, T + 8 + v, T + v)
    for st in (4, 2):
        for v in range(0, st, 2):
            pk(a, "add", T + v, T + v, T + v + st)
    a(f"v_add_f32 v{VM2}, v{T}, v{T+1}")
    cross4_sum(a, VM2, U4, U5)
    a(f"ds_write_b64 v{U2}, {vr(VS,2)} offset:{L_ST}")
    for v in range(16):
        f1, r = v >> 2, v & 3
        a(f"ds_write_b32 v{U1}, v{Y+v} offset:{(8*r+f1)*256}")
    a(f"v_lshrrev_b32 v{U0}, 3, v{V_LANE}")
    a(f"v_and_b32 v{U1}, 7, v{V_LANE}")
    a(f"s_lshl_b32 s{S_T0}, s{S_WAVE}, 12")
    a(f"s_add_u32 s{S_T0}, s{S_T0}, {L_YT}")
    a(f"v_lshl_add_u32 v{U2}, v{U0}, 8, s{S_T0}")
    a(f"v_lshl_add_u32 v{U2}, v{U1}, 5, v{U2}")
    a("s_waitcnt lgkmcnt(0)")
    a("s_barrier")
    Z = V_E
    a(f"s_cmp_lg_u32 s{S_WAVE}, 0")
    a("s_cbranch_scc1 L_notw0")
    stampe(a, 2)
    a(f"v_lshlrev_b32 v{U3}, 3, v{V_LANE}")
    a(f"ds_read_b64 {vr(T,2)}, v{U3} offset:{L_ST}")
    a(f"ds_read_b64 {vr(T+2,2)}, v{U3} offset:{L_ST+512}")
    a(f"s_lshl_b32 s{S_T0}, s{S_GRP}, 2")
    a(f"v_mov_b32 v{U5}, s{S_T0}")
    a(f"buffer_load_dword v{T+12}, v{U5}, {sr(SRD_DBG,4)}, 0 offen sc1")
    a(f"s_cmp_eq_u32 s{S_MT}, 15")
    a(f"s_cselect_b32 s{S_T0}, 37, 64")
    a(f"s_cselect_b32 s{S_T1}, 36, 64")
    a(f"v_cvt_f32_u32 v{T+4}, s{S_T0}")
    a(f"v_cvt_f32_u32 v{T+5}, s{S_T1}")
    a(f"v_cvt_f32_u32 v{T+6}, s{S_NVAL}")
    a(f"v_rcp_f32 v{T+7}, v{T+4}")
    a(f"v_rcp_f32 v{T+8}, v{T+5}")
    a(f"v_rcp_f32 v{T+9}, v{T+6}")
    a(f"s_lshl_b32 s{S_T0}, s{S_GRP}, 13")
    a(f"s_lshl_b32 s{S_T1}, s{S_MT}, 9")
    a(f"s_add_u32 s{S_T1}, s{S_T1}, s{S_T0}")
    a(f"v_add_u32 v{U4}, s{S_T0}, v{U3}")
    a(f"v_add_u32 v{U3}, s{S_T1}, v{U3}")
    a("s_waitcnt lgkmcnt(0)")
    a(f"v_add_f32 v{VS}, v{T}, v{T+2}")
    a(f"v_mul_f32 v{T+9}, v{VS}, v{T+9}")
    a(f"v_add_f32 v{VM2}, v{T+1}, v{T+3}")
    a(f"v_fma_f32 v{T+10}, v{T}, v{T+7}, -v{T+9}")
    a(f"v_fma_f32 v{T+11}, v{T+2}, v{T+8}, -v{T+9}")
    a(f"v_mul_f32 v{T+10}, v{T+10}, v{T+10}")
    a(f"v_mul_f32 v{T+11}, v{T+11}, v{T+11}")
    a(f"v_fmac_f32 v{VM2}, v{T+10}, v{T+4}")
    a(f"v_fmac_f32 v{VM2}, v{T+11}, v{T+5}")
    a(f"v_max_f32 v{VM2}, 0, v{VM2}")
    a(f"v_and_b32 v{VM2}, 0x7fffffff, v{VM2}")
    a(f"buffer_store_dwordx2 {vr(VS,2)}, v{U3}, {sr(SRD_WS,4)}, 0 offen sc1")
    a(f"s_mov_b32 s{S_T2}, 0")
    a(f"s_movk_i32 s{S_T3}, 4096")
    a("s_waitcnt vmcnt(1)")
    a.label("L_pollA")
    a(f"v_readfirstlane_b32 s{S_T1}, v{T+12}")
    a(f"s_add_u32 s{S_T2}, s{S_T2}, 1")
    a(f"s_cmp_ge_u32 s{S_T1}, 16")
    a("s_cbranch_scc1 L_pollB")
    a(f"buffer_load_dword v{T+12}, v{U5}, {sr(SRD_DBG,4)}, 0 offen sc1")
    a("s_waitcnt vmcnt(0)")
    a(f"s_cmp_lt_u32 s{S_T2}, 0x400000")
    a("s_cbranch_scc1 L_pollA")
    a.label("L_pollB")
    for i in range(16):
        so = "0" if i < 8 else f"s{S_T3}"
        a(f"buffer_load_dwordx2 {vr(ST+2*i,2)}, v{U4}, {sr(SRD_WS,4)}, {so} offen offset:{(i%8)*512} sc1")
    a("s_waitcnt vmcnt(0)")
    a(f"v_or3_b32 v{T}, v{ST+1}, v{ST+3}, v{ST+5}")
    a(f"v_or3_b32 v{T+1}, v{ST+7}, v{ST+9}, v{ST+11}")
    a(f"v_or3_b32 v{T+2}, v{ST+13}, v{ST+15}, v{ST+17}")
    a(f"v_or3_b32 v{T+3}, v{ST+19}, v{ST+21}, v{ST+23}")
    a(f"v_or3_b32 v{T+4}, v{ST+25}, v{ST+27}, v{ST+29}")
    a(f"v_or3_b32 v{T}, v{T}, v{T+1}, v{ST+31}")
    a(f"v_or3_b32 v{T+2}, v{T+2}, v{T+3}, v{T+4}")
    a(f"v_or_b32 v{T}, v{T}, v{T+2}")
    a(f"v_cmp_gt_i32 vcc, 0, v{T}")
    a(f"s_add_u32 s{S_T2}, s{S_T2}, 1")
    a("s_nop 3")
    a("s_cbranch_vccz L_got")
    a(f"s_cmp_lt_u32 s{S_T2}, 0x400000")
    a("s_cbranch_scc1 L_pollB")
    a.label("L_got")
    stamp(a, 4)
    stampe(a, 3)
    for i in range(8):
        pk(a, "add", T + 2 * i, ST + 2 * i, ST + 2 * i + 16)
    for st in (4, 2, 1):
        for v in range(st):
            pk(a, "add", T + 2 * v, T + 2 * v, T + 2 * (v + st))
    a(f"v_mul_f32 v{T}, {f2u(1.0/1993.0):#x}, v{T}")
    a(f"s_mov_b32 s{S_T0}, {f2u(1.0/128.0):#x}")
    a(f"s_mov_b32 s{S_T1}, {f2u(1.0/73.0):#x}")
    for i in range(16):
        a(f"v_fma_f32 v{ST+2*i}, v{ST+2*i}, s{S_T0 if i < 15 else S_T1}, -v{T}")
    for i in range(4):
        a(f"v_mul_f32 v{T+2+i}, v{ST+2*i}, v{ST+2*i}")
    for i in range(4, 15):
        a(f"v_fmac_f32 v{T+2+(i&3)}, v{ST+2*i}, v{ST+2*i}")
    a(f"v_mul_f32 v{ST+30}, v{ST+30}, v{ST+30}")
    a(f"v_add_f32 v{T+2}, v{T+2}, v{T+3}")
    a(f"v_add_f32 v{T+4}, v{T+4}, v{T+5}")
    a(f"v_fmac_f32 v{T+1}, 0x42920000, v{ST+30}")
    a(f"v_add_f32 v{T+2}, v{T+2}, v{T+4}")
    a(f"v_fmac_f32 v{T+1}, 0x43000000, v{T+2}")
    a(f"v_mov_b32 v{T+2}, {f2u(1e-5):#x}")
    a(f"v_fmac_f32 v{T+2}, {f2u(1.0/1993.0):#x}, v{T+1}")
    a(f"v_rsq_f32 v{T+2}, v{T+2}")
    a(f"v_lshlrev_b32 v{T+3}, 16, v{V_GB}")
    a(f"v_and_b32 v{T+4}, 0xffff0000, v{V_GB}")
    a(f"v_lshlrev_b32 v{U3}, 2, v{V_LANE}")
    a(f"v_mul_f32 v{T+2}, v{T+2}, v{T+3}")
    a(f"v_fma_f32 v{T+3}, -v{T}, v{T+2}, v{T+4}")
    a(f"ds_write_b32 v{U3}, v{T+2} offset:{L_SC}")
    a(f"ds_write_b32 v{U3}, v{T+3} offset:{L_SH}")
    a.label("L_notw0")
    for i2 in range(2):
        for half in range(2):
            a(f"ds_read_b128 {vr(Z+8*i2+4*half,4)}, v{U2} offset:{i2*2048+half*16}")
    a(f"s_lshl_b32 s{S_T0}, s{S_WAVE}, 4")
    a(f"s_lshl_b32 s{S_T1}, s{S_MT}, 7")
    a(f"s_add_u32 s{S_T0}, s{S_T0}, s{S_T1}")
    a(f"v_add_u32 v{U0}, s{S_T0}, v{U0}")
    a(f"v_add_u32 v{U3}, 8, v{U0}")
    a(f"s_mul_i32 s{S_T0}, s{S_B}, 2040832")
    a(f"s_lshl_b32 s{S_T1}, s{S_NT}, 7")
    a(f"s_add_u32 s{S_T0}, s{S_T0}, s{S_T1}")
    a(f"v_lshl_add_u32 v{U4}, v{U1}, 4, s{S_T0}")
    a(f"v_lshl_add_u32 v{OA0}, v{U0}, 10, v{U4}")
    a(f"v_lshl_add_u32 v{OA1}, v{U3}, 10, v{U4}")
    a(f"v_mov_b32 v{U4}, 0x7f000000")
    a(f"s_movk_i32 s{S_T0}, 1993")
    a(f"v_cmp_gt_u32 vcc, s{S_T0}, v{U0}")
    a(f"v_cmp_gt_u32 {sr(MASKS[0],2)}, s{S_T0}, v{U3}")
    a(f"v_lshlrev_b32 v{U1}, 5, v{U1}")
    a(f"v_cndmask_b32 v{OA0}, v{U4}, v{OA0}, vcc")
    a(f"v_cndmask_b32 v{OA1}, v{U4}, v{OA1}, {sr(MASKS[0],2)}")
    k0 = math.sqrt(2.0 / math.pi)
    c0 = -2.0 * k0 * math.log2(math.e)
    c1 = c0 * 0.044715
    C0, C1, ONE = V_O + 8, V_O + 10, V_O + 12
    a(f"v_mov_b32 v{C0}, {f2u(c0):#x}")
    a(f"v_mov_b32 v{C1}, {f2u(c1):#x}")
    a(f"v_mov_b32 v{ONE}, 1.0")
    a("s_waitcnt lgkmcnt(0)")
    a("s_barrier")
    SC, SH, E = V_E + 16, V_E + 24, V_E + 32
    a(f"ds_read_b128 {vr(SC,4)}, v{U1} offset:{L_SC}")
    a(f"ds_read_b128 {vr(SH,4)}, v{U1} offset:{L_SH}")
    a(f"ds_read_b128 {vr(SC+4,4)}, v{U1} offset:{L_SC+16}")
    a(f"ds_read_b128 {vr(SH+4,4)}, v{U1} offset:{L_SH+16}")
    a("s_waitcnt lgkmcnt(0)")
    for v in range(0, 16, 2):
        pk(a, "fma", Z + v, Z + v, SC + (v & 7), SH + (v & 7))
    for v in range(0, 16, 2):
        pk(a, "mul", E + v, Z + v, Z + v)
    for v in range(0, 16, 2):
        pk(a, "fma", E + v, E + v, C1, C0, mods="op_sel_hi:[1,0,0]")
    for v in range(0, 16, 2):
        pk(a, "mul", E + v, E + v, Z + v)
    for v in range(16):
        a(f"v_exp_f32 v{E+v}, v{E+v}")
    for v in range(0, 16, 2):
        pk(a, "add", E + v, E + v, ONE, mods="op_sel_hi:[1,0]")
    for v in range(16):
        a(f"v_rcp_f32 v{E+v}, v{E+v}")
    for v in range(0, 16, 2):
        pk(a, "mul", Z + v, Z + v, E + v)
    for v in range(8):
        a(f"v_cvt_pk_bf16_f32 v{E+v}, v{Z+2*v}, v{Z+2*v+1}")
    a(f"buffer_store_dwordx4 {vr(E,4)}, v{OA0}, {sr(SRD_OUT,4)}, 0 offen")
    a(f"buffer_store_dwordx4 {vr(E+4,4)}, v{OA1}, {sr(SRD_OUT,4)}, 0 offen")
    if DIAG:
        a(f"s_cmp_lg_u32 s{S_WAVE}, 0")
        a("s_cbranch_scc1 L_end")
        a("s_waitcnt vmcnt(0)")
        stampe(a, 4)
        stamp(a, 5, True)
        a("s_waitcnt lgkmcnt(0)")
        a(f"s_lshl_b32 s{S_T0}, s2, 6")
        a(f"s_add_u32 s{S_T0}, s{S_T0}, 0x1000000")
        a(f"v_mov_b32 v{V_T0}, s{S_T0}")
        for i in range(6):
            a(f"v_mov_b32 v{V_T1}, s{STAMPS[i]}")
            a(f"buffer_store_dword v{V_T1}, v{V_T0}, {sr(SRD_WS,4)}, 0 offen offset:{4*i}")
    a.label("L_end")
    a("s_endpgm")

    a.label("L_helper")
    hq = VQ()
    V_WOFF_ODD = 12
    a(f"v_xor_b32 v{V_WOFF_ODD}, 64, v{V_WOFF}")

    def h_w(t):
        slot, sig = t % NSLOT, t % 15
        for w in range(8):
            a(f"s_mov_b32 m0, {WRING + slot*8192 + w*1024}")
            a(f"s_add_u32 s{S_T0}, s{S_SW}, {tap_of(sig)*524288 + w*8192}")
            a(f"buffer_load_dwordx4 v{V_WOFF if w % 2 == 0 else V_WOFF_ODD}, {sr(SRD_W,4)}, s{S_T0} offen lds")
            hq.issue(('W', t, w))

    def h_x(d0, d1):
        for d in range(d0, d1):
            a(f"s_mov_b32 m0, {XBUF + d*XBLK}")
            a(f"s_add_u32 s{S_T0}, s{S_SX+1}, {d*8192}")
            a(f"buffer_load_dwordx4 v{V_XOFF}, {sr(SRD_X,4)}, s{S_T0} offen lds")
            hq.issue(('X', d))

    def h_bar(u):
        need = [('W', u + 1, w) for w in range(8)]
        if u == XSW:
            need += [('X', d) for d in range(32)]
        n = hq.need(need)
        if n is not None:
            a(f"s_waitcnt vmcnt({n})")
            hq.waited = max(hq.waited, len(hq.q) - 1 - n)
        a("s_barrier")

    todo = [('w', t) for t in range(NPRE, NSLOT)] + [('x', 8 * i) for i in range(4)]
    for _ in range(2):
        k, v = todo.pop(0)
        h_w(v)
    make_srd(a, SRD_WS, S_WS, WS_BYTES)
    make_srd(a, SRD_DBG, S_DBG, 256)
    make_srd(a, SRD_P, S_X, X_BYTES)
    a(f"s_lshl_b32 s{S_GRP}, s{S_B}, 3")
    a(f"s_add_u32 s{S_GRP}, s{S_GRP}, s{S_NT}")
    a(f"s_lshl_b32 s{S_T0}, s{S_GRP}, 13")
    a(f"s_lshl_b32 s{S_T1}, s{S_MT}, 9")
    a(f"s_add_u32 s{S_T1}, s{S_T1}, s{S_T0}")
    a(f"v_lshl_add_u32 v{V_T0}, v{V_LANE}, 3, s{S_T1}")
    a("v_mov_b32 v14, 0")
    a("v_mov_b32 v15, -1.0")
    a(f"buffer_store_dwordx2 v[14:15], v{V_T0}, {sr(SRD_WS,4)}, 0 offen sc1")
    hq.issue('clr')
    a(f"v_mov_b32 v{V_T2}, 0x7f000000")
    a(f"v_lshlrev_b32 v{V_T1}, 10, v{V_LANE}")
    a(f"v_add_u32 v{V_T1}, 384, v{V_T1}")
    a(f"s_mul_i32 s{S_T2}, s2, {32*1024}")
    a(f"s_mul_i32 s{S_T3}, s2, {30*1024}")
    a(f"v_cmp_gt_u32 vcc, 32, v{V_LANE}")
    a(f"v_cmp_gt_u32 s[72:73], 30, v{V_LANE}")
    a(f"s_lshl_b32 s{S_T1}, s{S_GRP}, 2")
    a(f"v_mov_b32 v18, s{S_T1}")
    a(f"v_cndmask_b32 v16, v{V_T2}, v{V_T1}, vcc")
    a(f"v_cndmask_b32 v17, v{V_T2}, v{V_T1}, s[72:73]")
    a("v_mov_b32 v19, 1")
    a(f"buffer_load_dword v20, v17, {sr(SRD_W,4)}, s{S_T3} offen")
    hq.issue('t0')
    a(f"buffer_load_dword v21, v16, {sr(SRD_P,4)}, s{S_T2} offen")
    hq.issue('t1')
    k, v = todo.pop(0)
    h_w(v)
    h_bar(-1)
    u = 0
    while todo:
        k, v = todo.pop(0)
        if k == 'w':
            h_w(v)
        else:
            h_x(v, v + 8)
        h_bar(u)
        u += 1
    assert hq.waited > hq.q.index('clr')
    a(f"v_cmp_eq_u32 vcc, 0, v{V_LANE}")
    a("s_nop 1")
    a("s_and_saveexec_b64 s[74:75], vcc")
    a(f"buffer_atomic_add v19, v18, {sr(SRD_DBG,4)}, 0 offen sc1")
    hq.issue('atom')
    a("s_mov_b64 exec, s[74:75]")
    while u <= XSW:
        h_bar(u)
        u += 1
    a(f"s_mov_b32 s{S_T0}, 0")
    a.label("L_hloop")
    a("s_barrier")
    a(f"s_add_u32 s{S_T0}, s{S_T0}, 1")
    a(f"s_cmp_lt_u32 s{S_T0}, 30")
    a("s_cbranch_scc1 L_hloop")
    a("s_waitcnt vmcnt(0)")
    a("s_endpgm")


def kd(name, nvgpr):
    acc = (nvgpr + 3) // 4 * 4
    return f""".p2align 6
.amdhsa_kernel {name}
  .amdhsa_next_free_vgpr {nvgpr}
  .amdhsa_next_free_sgpr 102
  .amdhsa_accum_offset {acc}
  .amdhsa_group_segment_fixed_size 0
  .amdhsa_kernarg_size 64
  .amdhsa_user_sgpr_count 2
  .amdhsa_user_sgpr_kernarg_segment_ptr 1
  .amdhsa_system_sgpr_workgroup_id_x 1
  .amdhsa_float_denorm_mode_32 3
.end_amdhsa_kernel
"""


def main():
    args = [x for x in ARGS if not x.startswith("-")]
    out = args[0] if args else f"cdna_kernels/{NAME}.s"
    hdr = f"""; conv stem (HuBERT): conv1d(k=15,s=2) as implicit GEMM + per-channel norm over time + GELU, one fused kernel
; @launch grid=(256,1,1) block=(576,1,1) lds={LDS1}
.amdgcn_target "amdgcn-amd-amdhsa--gfx950"
.text
"""
    a = Asm()
    gen_kernel(a)
    txt = hdr + a.text() + '.section .rodata,"a"\n' + kd(NAME + "_kernel", NVGPR)
    open(out, "w").write(txt)


if __name__ == "__main__":
    main()
```

```python
import sys
import struct
import math

NAME = "standalone__self_sup_conv_stem_hubert__speech"
ARGS = sys.argv[1:]
DIAG = "--diag" in ARGS
DIAGE = "--diage" in ARGS
DIAGH = "--diagh" in ARGS
if DIAGH:
    DIAG = True
CNT_OFF = 64 if DIAGH else 0
NPRE = 3
for _a in ARGS:
    if _a.startswith("--npre="):
        NPRE = int(_a[7:])

X_BYTES = 2 * 4000 * 512 * 2
W_BYTES = 15 * 512 * 512 * 2
OUT_BYTES = 2 * 1993 * 512 * 2
WS_BYTES = 268435456
XBLK = 1040
XBUF = 34 * XBLK
WRING = 2 * XBUF
NSLOT = 10
LDS1 = WRING + NSLOT * 8192
L_ST, L_SC, L_SH, L_EX, L_YT = 0, 1024, 1280, 2048, XBUF


def f2u(x):
    return struct.unpack("<I", struct.pack("<f", x))[0]


class Asm:
    def __init__(self):
        self.lines = []

    def __call__(self, s):
        self.lines.append("    " + s)

    def label(self, l):
        self.lines.append(l + ":")

    def c(self, s):
        self.lines.append("    ; " + s)

    def text(self):
        return "\n".join(self.lines) + "\n"


def vr(a, n=1):
    return f"v{a}" if n == 1 else f"v[{a}:{a+n-1}]"


def sr(a, n=1):
    return f"s{a}" if n == 1 else f"s[{a}:{a+n-1}]"


V_GB = 0
V_LANE, V_T0, V_T1, V_T2 = 1, 2, 3, 4
V_BADDR2, V_AADDR, V_BADDR, V_WOFF, V_XOFF, V_BIAS, V_XOFF5 = 5, 6, 7, 8, 9, 10, 11
V_E = 12
V_O = 72
V_B = 128
V_ACC = 136
NVGPR = 168

S_X, S_W, S_BI, S_GA = 4, 6, 8, 10
S_BE, S_OUT, S_DBG, S_WS = 12, 14, 16, 18
SRD_X, SRD_W, SRD_WS, SRD_P = 20, 24, 28, 32
SRD_OUT, SRD_DBG = 36, 40
S_K, S_Q, S_B, S_NT, S_MT = 44, 45, 46, 47, 48
S_WAVE, S_KH, S_NQ, S_WM0, S_XM0, S_XM05 = 49, 50, 51, 52, 53, 54
S_ITW, S_IT, S_T0, S_T1, S_T2, S_T3 = 55, 56, 57, 58, 59, 60
S_SW = 61
S_SX = 65
S_NVAL, S_CNT, S_GRP = 69, 70, 71
MASKS = list(range(4, 20, 2)) + list(range(72, 88, 2))
S_WV = 88
STAMPS = [90, 92, 94, 96, 98, 100]


def stampe(a, i):
    if DIAGE:
        a(f"s_memtime s[{STAMPS[i]}:{STAMPS[i]+1}]")


def stamp(a, i, rt=False):
    if DIAG and (rt or not DIAGE):
        a(f"s_mem{'real' if rt else ''}time s[{STAMPS[i]}:{STAMPS[i]+1}]")


def frag(par, g):
    return (V_E if par == 0 else V_O) + 4 * g


def tap_of(sig):
    return 2 * sig if sig < 8 else 2 * (sig - 8) + 1


def make_srd(a, srd, base, nbytes):
    a(f"s_mov_b32 s{srd}, s{base}")
    a(f"s_and_b32 s{srd+1}, s{base+1}, 0xffff")
    a(f"s_mov_b32 s{srd+2}, {nbytes}")
    a(f"s_mov_b32 s{srd+3}, 0x00020000")


class VQ:
    def __init__(self):
        self.q = []
        self.waited = -1

    def issue(self, tag):
        self.q.append(tag)

    def need(self, tags):
        idx = [self.q.index(t) for t in tags if t in self.q]
        if not idx:
            return None
        return len(self.q) - 1 - max(idx)


XSW = 11
_seq = [(0, g) for g in range(15)] + [(1, g) for g in range(14)]
A_SCHED = {}
_order = [11, 12, 13, 14, 0, 1, 2, 3, 4, 5, 6, 7, 8, 9, 10]
for _i, _sig in enumerate(_order):
    A_SCHED[_sig] = _seq[2 * _i: 2 * _i + 2]
X_SCHED = {11: (2, 0), 12: (2, 1), 13: (2, 2), 14: (2, 3), 0: (1, 4)}


def stage_regs(a):
    for rel in range(4):
        a(f"s_add_u32 s{S_T0}, s{S_ITW}, {rel}")
        a(f"s_and_b32 s{S_T0}, s{S_T0}, 7")
        a(f"s_lshl_b32 s{S_SW+rel}, s{S_T0}, 16")
        a(f"s_lshl_b32 s{S_SX+rel}, s{S_T0}, 7")


def a_read(a, par, g, buf):
    e = 2 * g + par
    off = buf * XBUF + (e >> 3) * XBLK + (e & 7) * 128
    a(f"ds_read_b128 {vr(frag(par, g), 4)}, v{V_AADDR} offset:{off}")


def b_read(a, t):
    slot = t % NSLOT
    b = V_B + 4 * (t & 1)
    va, sl = (V_BADDR, slot) if slot < 5 else (V_BADDR2, slot - 5)
    a(f"ds_read_b64_tr_b16 {vr(b, 2)}, v{va} offset:{sl*8192}")
    a(f"ds_read_b64_tr_b16 {vr(b+2, 2)}, v{va} offset:{sl*8192+512}")


def w_dma(a, trel):
    slot = trel % NSLOT
    srel, sig = trel // 15, trel % 15
    a(f"s_add_u32 m0, s{S_WM0}, {slot*8192}")
    a(f"s_add_u32 s{S_T0}, s{S_SW+srel}, {tap_of(sig) * 524288}")
    a(f"buffer_load_dwordx4 v{V_WOFF}, {sr(SRD_W,4)}, s{S_T0} offen lds")


def x_dma(a, srel, j):
    buf = srel & 1
    if j < 4:
        a(f"s_add_u32 m0, s{S_XM0}, {buf*XBUF + j*8*XBLK}")
        a(f"s_add_u32 s{S_T1}, s{S_SX+srel}, {j*65536}")
        a(f"buffer_load_dwordx4 v{V_XOFF}, {sr(SRD_X,4)}, s{S_T1} offen lds")
    else:
        a(f"s_add_u32 m0, s{S_XM05}, {buf*XBUF}")
        a(f"s_mov_b32 s{S_T1}, s{S_SX+srel}")
        a(f"buffer_load_dwordx4 v{V_XOFF5}, {sr(SRD_X,4)}, s{S_T1} offen lds")


def mfma(a, f, par, g, t):
    acc = V_ACC + 4 * f
    b = V_B + 4 * (t & 1)
    a(f"v_mfma_f32_16x16x32_bf16 {vr(acc,4)}, {vr(frag(par,g),4)}, {vr(b,4)}, {vr(acc,4)}")


def cross4_sum(a, v, t0, t1):
    a(f"v_mov_b32 v{t0}, v{v}")
    a(f"v_mov_b32 v{t1}, v{v}")
    a("s_nop 1")
    a(f"v_permlane32_swap_b32 v{t0}, v{t1}")
    a("s_nop 1")
    a(f"v_add_f32 v{v}, v{t0}, v{t1}")
    a(f"v_mov_b32 v{t0}, v{v}")
    a(f"v_mov_b32 v{t1}, v{v}")
    a("s_nop 1")
    a(f"v_permlane16_swap_b32 v{t0}, v{t1}")
    a("s_nop 1")
    a(f"v_add_f32 v{v}, v{t0}, v{t1}")


def pk(a, op, d, s0, s1, s2=None, mods=""):
    ops = f"{vr(d,2)}, {vr(s0,2)}, {vr(s1,2)}" + (f", {vr(s2,2)}" if s2 is not None else "")
    a(f"v_pk_{op}_f32 {ops} {mods}".rstrip())


def gen_kernel(a):
    kname = NAME + "_kernel"
    a.lines.append(f".globl {kname}")
    a.lines.append(".p2align 8")
    a.lines.append(f".type {kname},@function")
    a.label(kname)
    a("s_cmp_ge_u32 s2, 256")
    a("s_cbranch_scc1 L_end")
    stamp(a, 0, True)
    stamp(a, 1)
    a(f"s_load_dwordx16 {sr(S_X,16)}, s[0:1], 0")
    a(f"v_lshrrev_b32 v{V_T0}, 6, v0")
    a(f"v_and_b32 v{V_LANE}, 63, v0")
    a(f"v_readfirstlane_b32 s{S_WAVE}, v{V_T0}")
    a(f"s_and_b32 s{S_K}, s2, 7")
    a(f"s_lshr_b32 s{S_Q}, s2, 3")
    a(f"s_lshr_b32 s{S_B}, s{S_K}, 2")
    a(f"s_and_b32 s{S_NT}, s{S_K}, 3")
    a(f"s_lshl_b32 s{S_NT}, s{S_NT}, 1")
    a(f"s_lshr_b32 s{S_T0}, s{S_Q}, 4")
    a(f"s_add_u32 s{S_NT}, s{S_NT}, s{S_T0}")
    a(f"s_and_b32 s{S_MT}, s{S_Q}, 15")
    a(f"s_and_b32 s{S_WV}, s{S_WAVE}, 7")
    a(f"v_lshrrev_b32 v{V_T0}, 3, v{V_LANE}")
    a(f"v_and_b32 v{V_T1}, 7, v{V_LANE}")
    a(f"v_lshlrev_b32 v{V_T2}, 10, v{V_T0}")
    a(f"v_lshl_add_u32 v{V_T2}, v{V_T1}, 4, v{V_T2}")
    a(f"s_lshl_b32 s{S_T0}, s{S_WV}, 13")
    a(f"v_add_u32 v{V_XOFF}, s{S_T0}, v{V_T2}")
    a(f"s_and_b32 s{S_T1}, s{S_WV}, 1")
    a(f"s_add_u32 s{S_T2}, s{S_T1}, 32")
    a(f"s_lshl_b32 s{S_T3}, s{S_T2}, 13")
    a(f"v_add_u32 v{V_XOFF5}, s{S_T3}, v{V_T2}")
    a(f"s_mul_i32 s{S_XM05}, s{S_T2}, {XBLK}")
    a(f"s_mul_i32 s{S_XM0}, s{S_WV}, {XBLK}")
    a(f"v_bfe_u32 v{V_T2}, v{V_LANE}, 4, 1")
    a(f"s_lshl_b32 s{S_T1}, s{S_T1}, 1")
    a(f"v_or_b32 v{V_T2}, s{S_T1}, v{V_T2}")
    a(f"v_lshlrev_b32 v{V_T2}, 1, v{V_T2}")
    a(f"v_xor_b32 v{V_T2}, v{V_T2}, v{V_T1}")
    a(f"v_lshlrev_b32 v{V_WOFF}, 10, v{V_T0}")
    a(f"v_lshl_add_u32 v{V_WOFF}, v{V_T2}, 4, v{V_WOFF}")
    a(f"s_lshl_b32 s{S_T1}, s{S_NT}, 7")
    a(f"s_add_u32 s{S_T1}, s{S_T1}, s{S_T0}")
    a(f"v_add_u32 v{V_WOFF}, s{S_T1}, v{V_WOFF}")
    a(f"s_lshl_b32 s{S_WM0}, s{S_WV}, 10")
    a(f"s_add_u32 s{S_WM0}, s{S_WM0}, {WRING}")
    a(f"s_mov_b32 s{S_ITW}, s{S_K}")
    stage_regs(a)
    a(f"s_mul_i32 s{S_T0}, s{S_B}, 4096000")
    a(f"s_lshl_b32 s{S_T1}, s{S_MT}, 18")
    a(f"s_add_u32 s{S_T2}, s{S_T0}, s{S_T1}")
    a("s_waitcnt lgkmcnt(0)")
    a(f"s_add_u32 s{SRD_X}, s{S_X}, s{S_T2}")
    a(f"s_addc_u32 s{SRD_X+1}, s{S_X+1}, 0")
    a(f"s_and_b32 s{SRD_X+1}, s{SRD_X+1}, 0xffff")
    a(f"s_sub_u32 s{SRD_X+2}, 4096000, s{S_T1}")
    a(f"s_mov_b32 s{SRD_X+3}, 0x00020000")
    make_srd(a, SRD_W, S_W, W_BYTES)
    a(f"s_cmp_eq_u32 s{S_WAVE}, 8")
    a("s_cbranch_scc1 L_helper")

    q = VQ()
    for j in range(5):
        x_dma(a, 0, j)
        q.issue(('X', 0, j))
    for t in range(NPRE):
        w_dma(a, t)
        q.issue(('W', t))
    a(f"s_lshr_b32 s{S_KH}, s{S_WAVE}, 2")
    a(f"s_and_b32 s{S_NQ}, s{S_WAVE}, 3")
    a(f"s_lshl_b32 s{S_GRP}, s{S_B}, 3")
    a(f"s_add_u32 s{S_GRP}, s{S_GRP}, s{S_NT}")
    a(f"s_mov_b32 s{S_IT}, 0")
    a(f"v_and_b32 v{V_T0}, 15, v{V_LANE}")
    a(f"v_lshrrev_b32 v{V_T1}, 4, v{V_LANE}")
    make_srd(a, SRD_P, S_BI, 1024)
    a(f"s_lshl_b32 s{S_T0}, s{S_NT}, 7")
    a(f"s_lshl_b32 s{S_T1}, s{S_NQ}, 5")
    a(f"s_add_u32 s{S_T1}, s{S_T0}, s{S_T1}")
    a(f"v_lshl_add_u32 v{V_T2}, v{V_T0}, 1, s{S_T1}")
    a(f"buffer_load_ushort v{V_BIAS}, v{V_T2}, {sr(SRD_P,4)}, 0 offen")
    q.issue('bias')
    a(f"v_lshl_add_u32 v{V_T2}, v{V_LANE}, 1, s{S_T0}")
    make_srd(a, SRD_P, S_GA, 1024)
    a(f"buffer_load_ushort v{V_GB}, v{V_T2}, {sr(SRD_P,4)}, 0 offen")
    q.issue('gamma')
    make_srd(a, SRD_P, S_BE, 1024)
    a(f"v_mov_b32 v{V_B}, v{V_T2}")
    make_srd(a, SRD_WS, S_WS, WS_BYTES)
    make_srd(a, SRD_OUT, S_OUT, OUT_BYTES)
    make_srd(a, SRD_DBG, S_DBG, 256)
    a(f"v_mul_u32_u24 v{V_AADDR}, {2*XBLK}, v{V_T0}")
    a(f"s_lshl_b32 s{S_T0}, s{S_KH}, 2")
    a(f"v_add_u32 v{V_T2}, s{S_T0}, v{V_T1}")
    a(f"v_lshl_add_u32 v{V_AADDR}, v{V_T2}, 4, v{V_AADDR}")
    a(f"v_bfe_u32 v{V_T2}, v{V_LANE}, 2, 2")
    a(f"v_lshl_add_u32 v{V_BADDR}, v{V_T1}, 3, v{V_T2}")
    a(f"v_lshlrev_b32 v{V_BADDR}, 7, v{V_BADDR}")
    a(f"v_bfe_u32 v{V_T2}, v{V_LANE}, 3, 2")
    a(f"v_xor_b32 v{V_T2}, s{S_NQ}, v{V_T2}")
    a(f"v_lshl_add_u32 v{V_BADDR}, v{V_T2}, 5, v{V_BADDR}")
    a(f"v_and_b32 v{V_T2}, 3, v{V_LANE}")
    a(f"v_lshl_add_u32 v{V_BADDR}, v{V_T2}, 3, v{V_BADDR}")
    a(f"s_lshl_b32 s{S_T1}, s{S_KH}, 12")
    a(f"s_add_u32 s{S_T1}, s{S_T1}, {WRING}")
    a(f"v_add_u32 v{V_BADDR}, s{S_T1}, v{V_BADDR}")
    a(f"v_add_u32 v{V_BADDR2}, {5*8192}, v{V_BADDR}")
    a(f"s_movk_i32 s{S_NVAL}, 128")
    a(f"s_sub_u32 s{S_T1}, 37, s{S_KH}")
    a(f"s_cmp_eq_u32 s{S_MT}, 15")
    a(f"s_cselect_b32 s{S_NVAL}, 73, s{S_NVAL}")
    a(f"s_cselect_b32 s{S_CNT}, s{S_T1}, 64")
    a(f"v_lshl_add_u32 v{V_T2}, v{V_T1}, 5, s{S_T0}")
    for v in range(16):
        f1, r = v >> 2, v & 3
        a(f"s_sub_i32 s{S_T1}, s{S_NVAL}, {8*r+f1}")
        a(f"v_cmp_gt_i32 {sr(MASKS[v],2)}, s{S_T1}, v{V_T2}")
    a(f"s_lshl_b32 s{S_T0}, s{S_NQ}, 13")
    a(f"s_lshl_b32 s{S_T1}, s{S_KH}, 12")
    a(f"s_add_u32 s{S_T2}, s{S_T0}, s{S_T1}")
    a(f"s_add_u32 s{S_T2}, s{S_T2}, {L_EX}")
    a(f"s_xor_b32 s{S_T3}, s{S_T2}, 4096")
    a(f"v_lshl_add_u32 v{V_T0}, v{V_LANE}, 4, s{S_T3}")
    a(f"v_lshl_add_u32 v{V_T1}, v{V_LANE}, 4, s{S_T2}")
    a(f"buffer_load_ushort v{V_LANE}, v{V_B}, {sr(SRD_P,4)}, 0 offen")
    q.issue('beta')
    for i in range(32):
        a(f"v_mov_b32 v{V_ACC+i}, 0")
    n = q.need([('X', 0, j) for j in range(5)] + [('W', t) for t in range(NPRE)])
    a(f"s_waitcnt vmcnt({n})")
    a("s_barrier")
    b_read(a, 0)
    for sig in range(XSW, 15):
        for (par, g) in A_SCHED[sig]:
            a_read(a, par, g, 0)

    waits = {}
    for it in range(4):
        for u in range(30):
            t = 30 * it + u
            s, sig = t // 15, t % 15
            need = [('W', t + 1)] if t + 1 >= NPRE else []
            if sig == XSW:
                need += [('X', s + 1, j) for j in range(5)]
            n = q.need(need)
            if n is not None:
                waits[u] = min(waits.get(u, 99), n)
            q.issue(('W', t + NSLOT))
            if sig in X_SCHED:
                q.issue(('X', s + X_SCHED[sig][0], X_SCHED[sig][1]))

    stamp(a, 2)
    a.label("L_loop")
    for u in range(30):
        srel, sig = u // 15, u % 15
        par, j = (0, sig) if sig < 8 else (1, sig - 8)
        a.c(f"step u={u} stage_rel={srel} sig={sig} tap={tap_of(sig)}")
        a(f"s_waitcnt vmcnt({waits[u]}) lgkmcnt(0)")
        mfma(a, 0, par, j + 0, u)
        mfma(a, 1, par, j + 1, u)
        a("s_barrier")
        b_read(a, u + 1)
        mfma(a, 2, par, j + 2, u)
        mfma(a, 3, par, j + 3, u)
        if u == 30 - NSLOT:
            a(f"s_cmp_eq_u32 s{S_IT}, 3")
            a(f"s_cselect_b32 s{SRD_W+2}, 0, s{SRD_W+2}")
        w_dma(a, u + NSLOT)
        mfma(a, 4, par, j + 4, u)
        rd = A_SCHED[sig]
        buf = (srel + (1 if sig >= XSW else 0)) & 1
        a_read(a, rd[0][0], rd[0][1], buf)
        mfma(a, 5, par, j + 5, u)
        if len(rd) > 1:
            a_read(a, rd[1][0], rd[1][1], buf)
        mfma(a, 6, par, j + 6, u)
        if u == XSW:
            a(f"s_cmp_eq_u32 s{S_IT}, 3")
            a(f"s_cselect_b32 s{SRD_X+2}, 0, s{SRD_X+2}")
        if sig in X_SCHED:
            x_dma(a, srel + X_SCHED[sig][0], X_SCHED[sig][1])
        mfma(a, 7, par, j + 7, u)
    a(f"s_add_u32 s{S_ITW}, s{S_ITW}, 2")
    stage_regs(a)
    a(f"s_add_u32 s{S_IT}, s{S_IT}, 1")
    a(f"s_cmp_lt_u32 s{S_IT}, 4")
    a("s_cbranch_scc1 L_loop")

    a.c("epilogue")
    stamp(a, 3)
    stampe(a, 1)
    P = V_E
    Y = V_E + 16
    T = V_E + 32
    VS, VM2 = V_O, V_O + 1
    U0, U1, U2, U3 = V_O + 2, V_O + 3, V_O + 4, V_O + 5
    U4, U5 = V_O + 6, V_O + 7
    ST = V_O + 8
    UM = V_O + 40
    OA0, OA1 = V_O + 42, V_O + 43
    a("s_waitcnt lgkmcnt(0)")
    a(f"s_cmp_eq_u32 s{S_KH}, 0")
    a("s_cbranch_scc0 L_ex1")
    for f in range(4):
        a(f"ds_write_b128 v{V_T0}, {vr(V_ACC+16+4*f,4)} offset:{f*1024}")
    a("s_branch L_ex2")
    a.label("L_ex1")
    for f in range(4):
        a(f"ds_write_b128 v{V_T0}, {vr(V_ACC+4*f,4)} offset:{f*1024}")
    a("s_nop 1")
    for v in range(16):
        a(f"v_mov_b32 v{V_ACC+v}, v{V_ACC+16+v}")
    a.label("L_ex2")
    a(f"v_lshl_or_b32 v{V_GB}, v{V_LANE}, 16, v{V_GB}")
    a(f"v_mbcnt_lo_u32_b32 v{V_LANE}, -1, 0")
    a(f"v_mbcnt_hi_u32_b32 v{V_LANE}, -1, v{V_LANE}")
    a(f"v_lshlrev_b32 v{V_BIAS}, 16, v{V_BIAS}")
    a(f"v_and_b32 v{U0}, 15, v{V_LANE}")
    a(f"s_lshl_b32 s{S_T0}, s{S_NQ}, 6")
    a(f"s_add_u32 s{S_T0}, s{S_T0}, {L_YT}")
    a(f"v_lshl_add_u32 v{U1}, v{U0}, 2, s{S_T0}")
    a(f"v_lshl_add_u32 v{U1}, v{V_T2}, 8, v{U1}")
    a(f"s_lshl_b32 s{S_T0}, s{S_KH}, 9")
    a(f"s_lshl_b32 s{S_T1}, s{S_NQ}, 7")
    a(f"s_add_u32 s{S_T0}, s{S_T0}, s{S_T1}")
    a(f"v_lshl_add_u32 v{U2}, v{U0}, 3, s{S_T0}")
    a(f"v_cvt_f32_u32 v{U3}, s{S_CNT}")
    a(f"v_rcp_f32 v{U3}, v{U3}")
    for v in range(0, 16, 2):
        pk(a, "add", Y + v, V_ACC + v, V_BIAS, mods="op_sel_hi:[1,0]")
    a("s_waitcnt vmcnt(0) lgkmcnt(0)")
    a("s_barrier")
    for f in range(4):
        a(f"ds_read_b128 {vr(P+4*f,4)}, v{V_T1} offset:{f*1024}")
    for f in range(4):
        a(f"s_waitcnt lgkmcnt({3-f})")
        pk(a, "add", Y + 4 * f, Y + 4 * f, P + 4 * f)
        pk(a, "add", Y + 4 * f + 2, Y + 4 * f + 2, P + 4 * f + 2)
    for v in range(16):
        a(f"v_cndmask_b32 v{T+v}, 0, v{Y+v}, {sr(MASKS[v],2)}")
    for st in (8, 4, 2):
        for v in range(0, st, 2):
            pk(a, "add", T + v, T + v, T + v + st)
    a(f"v_add_f32 v{VS}, v{T}, v{T+1}")
    cross4_sum(a, VS, U4, U5)
    a(f"v_mul_f32 v{UM}, v{VS}, v{U3}")
    for v in range(0, 16, 2):
        pk(a, "add", T + v, Y + v, UM, mods="op_sel_hi:[1,0] neg_lo:[0,1] neg_hi:[0,1]")
    for v in range(16):
        a(f"v_cndmask_b32 v{T+v}, 0, v{T+v}, {sr(MASKS[v],2)}")
    for v in range(0, 8, 2):
        pk(a, "mul", T + v, T + v, T + v)
    for v in range(0, 8, 2):
        pk(a, "fma", T + v, T + 8 + v, T + 8 + v, T + v)
    for st in (4, 2):
        for v in range(0, st, 2):
            pk(a, "add", T + v, T + v, T + v + st)
    a(f"v_add_f32 v{VM2}, v{T}, v{T+1}")
    cross4_sum(a, VM2, U4, U5)
    a(f"ds_write_b64 v{U2}, {vr(VS,2)} offset:{L_ST}")
    for v in range(16):
        f1, r = v >> 2, v & 3
        a(f"ds_write_b32 v{U1}, v{Y+v} offset:{(8*r+f1)*256}")
    a(f"v_lshrrev_b32 v{U0}, 3, v{V_LANE}")
    a(f"v_and_b32 v{U1}, 7, v{V_LANE}")
    a(f"s_lshl_b32 s{S_T0}, s{S_WAVE}, 12")
    a(f"s_add_u32 s{S_T0}, s{S_T0}, {L_YT}")
    a(f"v_lshl_add_u32 v{U2}, v{U0}, 8, s{S_T0}")
    a(f"v_lshl_add_u32 v{U2}, v{U1}, 5, v{U2}")
    a("s_waitcnt lgkmcnt(0)")
    a("s_barrier")
    Z = V_E
    a(f"s_cmp_lg_u32 s{S_WAVE}, 0")
    a("s_cbranch_scc1 L_notw0")
    stampe(a, 2)
    a(f"v_lshlrev_b32 v{U3}, 3, v{V_LANE}")
    a(f"ds_read_b64 {vr(T,2)}, v{U3} offset:{L_ST}")
    a(f"ds_read_b64 {vr(T+2,2)}, v{U3} offset:{L_ST+512}")
    a(f"s_lshl_b32 s{S_T0}, s{S_GRP}, 2")
    a(f"v_mov_b32 v{U5}, s{S_T0}")
    a(f"buffer_load_dword v{T+12}, v{U5}, {sr(SRD_DBG,4)}, 0 offen offset:{CNT_OFF} sc1")
    a(f"s_cmp_eq_u32 s{S_MT}, 15")
    a(f"s_cselect_b32 s{S_T0}, 37, 64")
    a(f"s_cselect_b32 s{S_T1}, 36, 64")
    a(f"v_cvt_f32_u32 v{T+4}, s{S_T0}")
    a(f"v_cvt_f32_u32 v{T+5}, s{S_T1}")
    a(f"v_cvt_f32_u32 v{T+6}, s{S_NVAL}")
    a(f"v_rcp_f32 v{T+7}, v{T+4}")
    a(f"v_rcp_f32 v{T+8}, v{T+5}")
    a(f"v_rcp_f32 v{T+9}, v{T+6}")
    a(f"s_lshl_b32 s{S_T0}, s{S_GRP}, 13")
    a(f"s_lshl_b32 s{S_T1}, s{S_MT}, 9")
    a(f"s_add_u32 s{S_T1}, s{S_T1}, s{S_T0}")
    a(f"v_add_u32 v{U4}, s{S_T0}, v{U3}")
    a(f"v_add_u32 v{U3}, s{S_T1}, v{U3}")
    a("s_waitcnt lgkmcnt(0)")
    a(f"v_add_f32 v{VS}, v{T}, v{T+2}")
    a(f"v_mul_f32 v{T+9}, v{VS}, v{T+9}")
    a(f"v_add_f32 v{VM2}, v{T+1}, v{T+3}")
    a(f"v_fma_f32 v{T+10}, v{T}, v{T+7}, -v{T+9}")
    a(f"v_fma_f32 v{T+11}, v{T+2}, v{T+8}, -v{T+9}")
    a(f"v_mul_f32 v{T+10}, v{T+10}, v{T+10}")
    a(f"v_mul_f32 v{T+11}, v{T+11}, v{T+11}")
    a(f"v_fmac_f32 v{VM2}, v{T+10}, v{T+4}")
    a(f"v_fmac_f32 v{VM2}, v{T+11}, v{T+5}")
    a(f"v_max_f32 v{VM2}, 0, v{VM2}")
    a(f"v_and_b32 v{VM2}, 0x7fffffff, v{VM2}")
    a(f"buffer_store_dwordx2 {vr(VS,2)}, v{U3}, {sr(SRD_WS,4)}, 0 offen sc1")
    a(f"s_mov_b32 s{S_T2}, 0")
    a(f"s_movk_i32 s{S_T3}, 4096")
    a("s_waitcnt vmcnt(1)")
    a.label("L_pollA")
    a(f"v_readfirstlane_b32 s{S_T1}, v{T+12}")
    a(f"s_add_u32 s{S_T2}, s{S_T2}, 1")
    a(f"s_cmp_ge_u32 s{S_T1}, 16")
    a("s_cbranch_scc1 L_pollB")
    a(f"buffer_load_dword v{T+12}, v{U5}, {sr(SRD_DBG,4)}, 0 offen offset:{CNT_OFF} sc1")
    a("s_waitcnt vmcnt(0)")
    a(f"s_cmp_lt_u32 s{S_T2}, 0x400000")
    a("s_cbranch_scc1 L_pollA")
    a.label("L_pollB")
    for i in range(16):
        so = "0" if i < 8 else f"s{S_T3}"
        a(f"buffer_load_dwordx2 {vr(ST+2*i,2)}, v{U4}, {sr(SRD_WS,4)}, {so} offen offset:{(i%8)*512} sc1")
    a("s_waitcnt vmcnt(0)")
    a(f"v_or3_b32 v{T}, v{ST+1}, v{ST+3}, v{ST+5}")
    a(f"v_or3_b32 v{T+1}, v{ST+7}, v{ST+9}, v{ST+11}")
    a(f"v_or3_b32 v{T+2}, v{ST+13}, v{ST+15}, v{ST+17}")
    a(f"v_or3_b32 v{T+3}, v{ST+19}, v{ST+21}, v{ST+23}")
    a(f"v_or3_b32 v{T+4}, v{ST+25}, v{ST+27}, v{ST+29}")
    a(f"v_or3_b32 v{T}, v{T}, v{T+1}, v{ST+31}")
    a(f"v_or3_b32 v{T+2}, v{T+2}, v{T+3}, v{T+4}")
    a(f"v_or_b32 v{T}, v{T}, v{T+2}")
    a(f"v_cmp_gt_i32 vcc, 0, v{T}")
    a(f"s_add_u32 s{S_T2}, s{S_T2}, 1")
    a("s_nop 3")
    a("s_cbranch_vccz L_got")
    a(f"s_cmp_lt_u32 s{S_T2}, 0x400000")
    a("s_cbranch_scc1 L_pollB")
    a.label("L_got")
    stamp(a, 4)
    stampe(a, 3)
    for i in range(8):
        pk(a, "add", T + 2 * i, ST + 2 * i, ST + 2 * i + 16)
    for st in (4, 2, 1):
        for v in range(st):
            pk(a, "add", T + 2 * v, T + 2 * v, T + 2 * (v + st))
    a(f"v_mul_f32 v{T}, {f2u(1.0/1993.0):#x}, v{T}")
    a(f"s_mov_b32 s{S_T0}, {f2u(1.0/128.0):#x}")
    a(f"s_mov_b32 s{S_T1}, {f2u(1.0/73.0):#x}")
    for i in range(16):
        a(f"v_fma_f32 v{ST+2*i}, v{ST+2*i}, s{S_T0 if i < 15 else S_T1}, -v{T}")
    for i in range(4):
        a(f"v_mul_f32 v{T+2+i}, v{ST+2*i}, v{ST+2*i}")
    for i in range(4, 15):
        a(f"v_fmac_f32 v{T+2+(i&3)}, v{ST+2*i}, v{ST+2*i}")
    a(f"v_mul_f32 v{ST+30}, v{ST+30}, v{ST+30}")
    a(f"v_add_f32 v{T+2}, v{T+2}, v{T+3}")
    a(f"v_add_f32 v{T+4}, v{T+4}, v{T+5}")
    a(f"v_fmac_f32 v{T+1}, 0x42920000, v{ST+30}")
    a(f"v_add_f32 v{T+2}, v{T+2}, v{T+4}")
    a(f"v_fmac_f32 v{T+1}, 0x43000000, v{T+2}")
    a(f"v_mov_b32 v{T+2}, {f2u(1e-5):#x}")
    a(f"v_fmac_f32 v{T+2}, {f2u(1.0/1993.0):#x}, v{T+1}")
    a(f"v_rsq_f32 v{T+2}, v{T+2}")
    a(f"v_lshlrev_b32 v{T+3}, 16, v{V_GB}")
    a(f"v_and_b32 v{T+4}, 0xffff0000, v{V_GB}")
    a(f"v_lshlrev_b32 v{U3}, 2, v{V_LANE}")
    a(f"v_mul_f32 v{T+2}, v{T+2}, v{T+3}")
    a(f"v_fma_f32 v{T+3}, -v{T}, v{T+2}, v{T+4}")
    a(f"ds_write_b32 v{U3}, v{T+2} offset:{L_SC}")
    a(f"ds_write_b32 v{U3}, v{T+3} offset:{L_SH}")
    a.label("L_notw0")
    for i2 in range(2):
        for half in range(2):
            a(f"ds_read_b128 {vr(Z+8*i2+4*half,4)}, v{U2} offset:{i2*2048+half*16}")
    a(f"s_lshl_b32 s{S_T0}, s{S_WAVE}, 4")
    a(f"s_lshl_b32 s{S_T1}, s{S_MT}, 7")
    a(f"s_add_u32 s{S_T0}, s{S_T0}, s{S_T1}")
    a(f"v_add_u32 v{U0}, s{S_T0}, v{U0}")
    a(f"v_add_u32 v{U3}, 8, v{U0}")
    a(f"s_mul_i32 s{S_T0}, s{S_B}, 2040832")
    a(f"s_lshl_b32 s{S_T1}, s{S_NT}, 7")
    a(f"s_add_u32 s{S_T0}, s{S_T0}, s{S_T1}")
    a(f"v_lshl_add_u32 v{U4}, v{U1}, 4, s{S_T0}")
    a(f"v_lshl_add_u32 v{OA0}, v{U0}, 10, v{U4}")
    a(f"v_lshl_add_u32 v{OA1}, v{U3}, 10, v{U4}")
    a(f"v_mov_b32 v{U4}, 0x7f000000")
    a(f"s_movk_i32 s{S_T0}, 1993")
    a(f"v_cmp_gt_u32 vcc, s{S_T0}, v{U0}")
    a(f"v_cmp_gt_u32 {sr(MASKS[0],2)}, s{S_T0}, v{U3}")
    a(f"v_lshlrev_b32 v{U1}, 5, v{U1}")
    a(f"v_cndmask_b32 v{OA0}, v{U4}, v{OA0}, vcc")
    a(f"v_cndmask_b32 v{OA1}, v{U4}, v{OA1}, {sr(MASKS[0],2)}")
    k0 = math.sqrt(2.0 / math.pi)
    c0 = -2.0 * k0 * math.log2(math.e)
    c1 = c0 * 0.044715
    C0, C1, ONE = V_O + 8, V_O + 10, V_O + 12
    a(f"v_mov_b32 v{C0}, {f2u(c0):#x}")
    a(f"v_mov_b32 v{C1}, {f2u(c1):#x}")
    a(f"v_mov_b32 v{ONE}, 1.0")
    a("s_waitcnt lgkmcnt(0)")
    a("s_barrier")
    SC, SH, E = V_E + 16, V_E + 24, V_E + 32
    a(f"ds_read_b128 {vr(SC,4)}, v{U1} offset:{L_SC}")
    a(f"ds_read_b128 {vr(SH,4)}, v{U1} offset:{L_SH}")
    a(f"ds_read_b128 {vr(SC+4,4)}, v{U1} offset:{L_SC+16}")
    a(f"ds_read_b128 {vr(SH+4,4)}, v{U1} offset:{L_SH+16}")
    a("s_waitcnt lgkmcnt(0)")
    for v in range(0, 16, 2):
        pk(a, "fma", Z + v, Z + v, SC + (v & 7), SH + (v & 7))
    for v in range(0, 16, 2):
        pk(a, "mul", E + v, Z + v, Z + v)
    for v in range(0, 16, 2):
        pk(a, "fma", E + v, E + v, C1, C0, mods="op_sel_hi:[1,0,0]")
    for v in range(0, 16, 2):
        pk(a, "mul", E + v, E + v, Z + v)
    for v in range(16):
        a(f"v_exp_f32 v{E+v}, v{E+v}")
    for v in range(0, 16, 2):
        pk(a, "add", E + v, E + v, ONE, mods="op_sel_hi:[1,0]")
    for v in range(16):
        a(f"v_rcp_f32 v{E+v}, v{E+v}")
    for v in range(0, 16, 2):
        pk(a, "mul", Z + v, Z + v, E + v)
    for v in range(8):
        a(f"v_cvt_pk_bf16_f32 v{E+v}, v{Z+2*v}, v{Z+2*v+1}")
    a(f"buffer_store_dwordx4 {vr(E,4)}, v{OA0}, {sr(SRD_OUT,4)}, 0 offen")
    a(f"buffer_store_dwordx4 {vr(E+4,4)}, v{OA1}, {sr(SRD_OUT,4)}, 0 offen")
    if DIAG:
        a(f"s_cmp_lg_u32 s{S_WAVE}, 0")
        a("s_cbranch_scc1 L_end")
        a("s_waitcnt vmcnt(0)")
        stampe(a, 4)
        stamp(a, 5, True)
        a("s_waitcnt lgkmcnt(0)")
        if DIAGH:
            a(f"v_mov_b32 v{V_T0}, 0")
            a(f"v_cmp_eq_u32 vcc, 0, v{V_LANE}")
            a("s_nop 1")
            a("s_and_saveexec_b64 s[74:75], vcc")
            a(f"v_mov_b32 v{V_T1}, s{STAMPS[5]}")
            a(f"buffer_atomic_umax v{V_T1}, v{V_T0}, {sr(SRD_DBG,4)}, 0 offen sc1")
            a(f"s_not_b32 s{S_T0}, s{STAMPS[0]}")
            a(f"v_mov_b32 v{V_T1}, s{S_T0}")
            a(f"buffer_atomic_umax v{V_T1}, v{V_T0}, {sr(SRD_DBG,4)}, 0 offen offset:4 sc1")
            a(f"v_mov_b32 v{V_T1}, s{STAMPS[0]}")
            a(f"buffer_atomic_umax v{V_T1}, v{V_T0}, {sr(SRD_DBG,4)}, 0 offen offset:8 sc1")
            for i in range(3):
                a(f"s_sub_u32 s{S_T0}, s{STAMPS[i+2]}, s{STAMPS[i+1]}")
                a(f"v_mov_b32 v{V_T1}, s{S_T0}")
                a(f"buffer_atomic_umax v{V_T1}, v{V_T0}, {sr(SRD_DBG,4)}, 0 offen offset:{12+4*i} sc1")
                a(f"buffer_atomic_add v{V_T1}, v{V_T0}, {sr(SRD_DBG,4)}, 0 offen offset:{24+4*i} sc1")
            a("s_mov_b64 exec, s[74:75]")
        a(f"s_lshl_b32 s{S_T0}, s2, 6")
        a(f"s_add_u32 s{S_T0}, s{S_T0}, 0x1000000")
        a(f"v_mov_b32 v{V_T0}, s{S_T0}")
        for i in range(6):
            a(f"v_mov_b32 v{V_T1}, s{STAMPS[i]}")
            a(f"buffer_store_dword v{V_T1}, v{V_T0}, {sr(SRD_WS,4)}, 0 offen offset:{4*i}")
    a.label("L_end")
    a("s_endpgm")

    a.label("L_helper")
    hq = VQ()
    V_WOFF_ODD = 12
    a(f"v_xor_b32 v{V_WOFF_ODD}, 64, v{V_WOFF}")

    def h_w(t):
        slot, sig = t % NSLOT, t % 15
        for w in range(8):
            a(f"s_mov_b32 m0, {WRING + slot*8192 + w*1024}")
            a(f"s_add_u32 s{S_T0}, s{S_SW}, {tap_of(sig)*524288 + w*8192}")
            a(f"buffer_load_dwordx4 v{V_WOFF if w % 2 == 0 else V_WOFF_ODD}, {sr(SRD_W,4)}, s{S_T0} offen lds")
            hq.issue(('W', t, w))

    def h_x(d0, d1):
        for d in range(d0, d1):
            a(f"s_mov_b32 m0, {XBUF + d*XBLK}")
            a(f"s_add_u32 s{S_T0}, s{S_SX+1}, {d*8192}")
            a(f"buffer_load_dwordx4 v{V_XOFF}, {sr(SRD_X,4)}, s{S_T0} offen lds")
            hq.issue(('X', d))

    def h_bar(u):
        need = [('W', u + 1, w) for w in range(8)]
        if u == XSW:
            need += [('X', d) for d in range(32)]
        n = hq.need(need)
        if n is not None:
            a(f"s_waitcnt vmcnt({n})")
            hq.waited = max(hq.waited, len(hq.q) - 1 - n)
        a("s_barrier")

    todo = [('w', t) for t in range(NPRE, NSLOT)] + [('x', 8 * i) for i in range(4)]
    for _ in range(2):
        k, v = todo.pop(0)
        h_w(v)
    make_srd(a, SRD_WS, S_WS, WS_BYTES)
    make_srd(a, SRD_DBG, S_DBG, 256)
    make_srd(a, SRD_P, S_X, X_BYTES)
    a(f"s_lshl_b32 s{S_GRP}, s{S_B}, 3")
    a(f"s_add_u32 s{S_GRP}, s{S_GRP}, s{S_NT}")
    a(f"s_lshl_b32 s{S_T0}, s{S_GRP}, 13")
    a(f"s_lshl_b32 s{S_T1}, s{S_MT}, 9")
    a(f"s_add_u32 s{S_T1}, s{S_T1}, s{S_T0}")
    a(f"v_lshl_add_u32 v{V_T0}, v{V_LANE}, 3, s{S_T1}")
    a("v_mov_b32 v14, 0")
    a("v_mov_b32 v15, -1.0")
    a(f"buffer_store_dwordx2 v[14:15], v{V_T0}, {sr(SRD_WS,4)}, 0 offen sc1")
    hq.issue('clr')
    a(f"v_mov_b32 v{V_T2}, 0x7f000000")
    a(f"v_lshlrev_b32 v{V_T1}, 10, v{V_LANE}")
    a(f"v_add_u32 v{V_T1}, 384, v{V_T1}")
    a(f"s_mul_i32 s{S_T2}, s2, {32*1024}")
    a(f"s_mul_i32 s{S_T3}, s2, {30*1024}")
    a(f"v_cmp_gt_u32 vcc, 32, v{V_LANE}")
    a(f"v_cmp_gt_u32 s[72:73], 30, v{V_LANE}")
    a(f"s_lshl_b32 s{S_T1}, s{S_GRP}, 2")
    a(f"v_mov_b32 v18, s{S_T1}")
    a(f"v_cndmask_b32 v16, v{V_T2}, v{V_T1}, vcc")
    a(f"v_cndmask_b32 v17, v{V_T2}, v{V_T1}, s[72:73]")
    a("v_mov_b32 v19, 1")
    a(f"buffer_load_dword v20, v17, {sr(SRD_W,4)}, s{S_T3} offen")
    hq.issue('t0')
    a(f"buffer_load_dword v21, v16, {sr(SRD_P,4)}, s{S_T2} offen")
    hq.issue('t1')
    k, v = todo.pop(0)
    h_w(v)
    h_bar(-1)
    u = 0
    while todo:
        k, v = todo.pop(0)
        if k == 'w':
            h_w(v)
        else:
            h_x(v, v + 8)
        h_bar(u)
        u += 1
    assert hq.waited > hq.q.index('clr')
    a(f"v_cmp_eq_u32 vcc, 0, v{V_LANE}")
    a("s_nop 1")
    a("s_and_saveexec_b64 s[74:75], vcc")
    a(f"buffer_atomic_add v19, v18, {sr(SRD_DBG,4)}, 0 offen offset:{CNT_OFF} sc1")
    hq.issue('atom')
    a("s_mov_b64 exec, s[74:75]")
    while u <= XSW:
        h_bar(u)
        u += 1
    a(f"s_mov_b32 s{S_T0}, 0")
    a.label("L_hloop")
    a("s_barrier")
    a(f"s_add_u32 s{S_T0}, s{S_T0}, 1")
    a(f"s_cmp_lt_u32 s{S_T0}, 30")
    a("s_cbranch_scc1 L_hloop")
    a("s_waitcnt vmcnt(0)")
    a("s_endpgm")


def kd(name, nvgpr):
    acc = (nvgpr + 3) // 4 * 4
    return f""".p2align 6
.amdhsa_kernel {name}
  .amdhsa_next_free_vgpr {nvgpr}
  .amdhsa_next_free_sgpr 102
  .amdhsa_accum_offset {acc}
  .amdhsa_group_segment_fixed_size 0
  .amdhsa_kernarg_size 64
  .amdhsa_user_sgpr_count 2
  .amdhsa_user_sgpr_kernarg_segment_ptr 1
  .amdhsa_system_sgpr_workgroup_id_x 1
  .amdhsa_float_denorm_mode_32 3
.end_amdhsa_kernel
"""


def main():
    args = [x for x in ARGS if not x.startswith("-")]
    out = args[0] if args else f"cdna_kernels/{NAME}.s"
    hdr = f"""; conv stem (HuBERT): conv1d(k=15,s=2) as implicit GEMM + per-channel norm over time + GELU, one fused kernel
; @launch grid=(256,1,1) block=(576,1,1) lds={LDS1}
.amdgcn_target "amdgcn-amd-amdhsa--gfx950"
.text
"""
    a = Asm()
    gen_kernel(a)
    txt = hdr + a.text() + '.section .rodata,"a"\n' + kd(NAME + "_kernel", NVGPR)
    open(out, "w").write(txt)


if __name__ == "__main__":
    main()
```

```python
import sys
import struct
import math

NAME = "standalone__self_sup_conv_stem_hubert__speech"
ARGS = sys.argv[1:]
DIAG = "--diag" in ARGS
DIAGE = "--diage" in ARGS
DIAGH = "--diagh" in ARGS
if DIAGH:
    DIAG = True
CNT_OFF = 64 if DIAGH else 0
OFLAG = ""
for _a in ARGS:
    if _a.startswith("--oflag="):
        OFLAG = _a[8:].replace("+", " ")
NPRE = 3
for _a in ARGS:
    if _a.startswith("--npre="):
        NPRE = int(_a[7:])

X_BYTES = 2 * 4000 * 512 * 2
W_BYTES = 15 * 512 * 512 * 2
OUT_BYTES = 2 * 1993 * 512 * 2
WS_BYTES = 268435456
XBLK = 1040
XBUF = 34 * XBLK
WRING = 2 * XBUF
NSLOT = 10
LDS1 = WRING + NSLOT * 8192
L_ST, L_SC, L_SH, L_EX, L_YT = 0, 1024, 1280, 2048, XBUF


def f2u(x):
    return struct.unpack("<I", struct.pack("<f", x))[0]


class Asm:
    def __init__(self):
        self.lines = []

    def __call__(self, s):
        self.lines.append("    " + s)

    def label(self, l):
        self.lines.append(l + ":")

    def c(self, s):
        self.lines.append("    ; " + s)

    def text(self):
        return "\n".join(self.lines) + "\n"


def vr(a, n=1):
    return f"v{a}" if n == 1 else f"v[{a}:{a+n-1}]"


def sr(a, n=1):
    return f"s{a}" if n == 1 else f"s[{a}:{a+n-1}]"


V_GB = 0
V_LANE, V_T0, V_T1, V_T2 = 1, 2, 3, 4
V_BADDR2, V_AADDR, V_BADDR, V_WOFF, V_XOFF, V_BIAS, V_XOFF5 = 5, 6, 7, 8, 9, 10, 11
V_E = 12
V_O = 72
V_B = 128
V_ACC = 136
NVGPR = 168

S_X, S_W, S_BI, S_GA = 4, 6, 8, 10
S_BE, S_OUT, S_DBG, S_WS = 12, 14, 16, 18
SRD_X, SRD_W, SRD_WS, SRD_P = 20, 24, 28, 32
SRD_OUT, SRD_DBG = 36, 40
S_K, S_Q, S_B, S_NT, S_MT = 44, 45, 46, 47, 48
S_WAVE, S_KH, S_NQ, S_WM0, S_XM0, S_XM05 = 49, 50, 51, 52, 53, 54
S_ITW, S_IT, S_T0, S_T1, S_T2, S_T3 = 55, 56, 57, 58, 59, 60
S_SW = 61
S_SX = 65
S_NVAL, S_CNT, S_GRP = 69, 70, 71
MASKS = list(range(4, 20, 2)) + list(range(72, 88, 2))
S_WV = 88
STAMPS = [90, 92, 94, 96, 98, 100]


def stampe(a, i):
    if DIAGE:
        a(f"s_memtime s[{STAMPS[i]}:{STAMPS[i]+1}]")


def stamp(a, i, rt=False):
    if DIAG and (rt or not DIAGE):
        a(f"s_mem{'real' if rt else ''}time s[{STAMPS[i]}:{STAMPS[i]+1}]")


def frag(par, g):
    return (V_E if par == 0 else V_O) + 4 * g


def tap_of(sig):
    return 2 * sig if sig < 8 else 2 * (sig - 8) + 1


def make_srd(a, srd, base, nbytes):
    a(f"s_mov_b32 s{srd}, s{base}")
    a(f"s_and_b32 s{srd+1}, s{base+1}, 0xffff")
    a(f"s_mov_b32 s{srd+2}, {nbytes}")
    a(f"s_mov_b32 s{srd+3}, 0x00020000")


class VQ:
    def __init__(self):
        self.q = []
        self.waited = -1

    def issue(self, tag):
        self.q.append(tag)

    def need(self, tags):
        idx = [self.q.index(t) for t in tags if t in self.q]
        if not idx:
            return None
        return len(self.q) - 1 - max(idx)


XSW = 11
_seq = [(0, g) for g in range(15)] + [(1, g) for g in range(14)]
A_SCHED = {}
_order = [11, 12, 13, 14, 0, 1, 2, 3, 4, 5, 6, 7, 8, 9, 10]
for _i, _sig in enumerate(_order):
    A_SCHED[_sig] = _seq[2 * _i: 2 * _i + 2]
X_SCHED = {11: (2, 0), 12: (2, 1), 13: (2, 2), 14: (2, 3), 0: (1, 4)}


def stage_regs(a):
    for rel in range(4):
        a(f"s_add_u32 s{S_T0}, s{S_ITW}, {rel}")
        a(f"s_and_b32 s{S_T0}, s{S_T0}, 7")
        a(f"s_lshl_b32 s{S_SW+rel}, s{S_T0}, 16")
        a(f"s_lshl_b32 s{S_SX+rel}, s{S_T0}, 7")


def a_read(a, par, g, buf):
    e = 2 * g + par
    off = buf * XBUF + (e >> 3) * XBLK + (e & 7) * 128
    a(f"ds_read_b128 {vr(frag(par, g), 4)}, v{V_AADDR} offset:{off}")


def b_read(a, t):
    slot = t % NSLOT
    b = V_B + 4 * (t & 1)
    va, sl = (V_BADDR, slot) if slot < 5 else (V_BADDR2, slot - 5)
    a(f"ds_read_b64_tr_b16 {vr(b, 2)}, v{va} offset:{sl*8192}")
    a(f"ds_read_b64_tr_b16 {vr(b+2, 2)}, v{va} offset:{sl*8192+512}")


def w_dma(a, trel):
    slot = trel % NSLOT
    srel, sig = trel // 15, trel % 15
    a(f"s_add_u32 m0, s{S_WM0}, {slot*8192}")
    a(f"s_add_u32 s{S_T0}, s{S_SW+srel}, {tap_of(sig) * 524288}")
    a(f"buffer_load_dwordx4 v{V_WOFF}, {sr(SRD_W,4)}, s{S_T0} offen lds")


def x_dma(a, srel, j):
    buf = srel & 1
    if j < 4:
        a(f"s_add_u32 m0, s{S_XM0}, {buf*XBUF + j*8*XBLK}")
        a(f"s_add_u32 s{S_T1}, s{S_SX+srel}, {j*65536}")
        a(f"buffer_load_dwordx4 v{V_XOFF}, {sr(SRD_X,4)}, s{S_T1} offen lds")
    else:
        a(f"s_add_u32 m0, s{S_XM05}, {buf*XBUF}")
        a(f"s_mov_b32 s{S_T1}, s{S_SX+srel}")
        a(f"buffer_load_dwordx4 v{V_XOFF5}, {sr(SRD_X,4)}, s{S_T1} offen lds")


def mfma(a, f, par, g, t):
    acc = V_ACC + 4 * f
    b = V_B + 4 * (t & 1)
    a(f"v_mfma_f32_16x16x32_bf16 {vr(acc,4)}, {vr(frag(par,g),4)}, {vr(b,4)}, {vr(acc,4)}")


def cross4_sum(a, v, t0, t1):
    a(f"v_mov_b32 v{t0}, v{v}")
    a(f"v_mov_b32 v{t1}, v{v}")
    a("s_nop 1")
    a(f"v_permlane32_swap_b32 v{t0}, v{t1}")
    a("s_nop 1")
    a(f"v_add_f32 v{v}, v{t0}, v{t1}")
    a(f"v_mov_b32 v{t0}, v{v}")
    a(f"v_mov_b32 v{t1}, v{v}")
    a("s_nop 1")
    a(f"v_permlane16_swap_b32 v{t0}, v{t1}")
    a("s_nop 1")
    a(f"v_add_f32 v{v}, v{t0}, v{t1}")


def pk(a, op, d, s0, s1, s2=None, mods=""):
    ops = f"{vr(d,2)}, {vr(s0,2)}, {vr(s1,2)}" + (f", {vr(s2,2)}" if s2 is not None else "")
    a(f"v_pk_{op}_f32 {ops} {mods}".rstrip())


def gen_kernel(a):
    kname = NAME + "_kernel"
    a.lines.append(f".globl {kname}")
    a.lines.append(".p2align 8")
    a.lines.append(f".type {kname},@function")
    a.label(kname)
    a("s_cmp_ge_u32 s2, 256")
    a("s_cbranch_scc1 L_end")
    stamp(a, 0, True)
    stamp(a, 1)
    a(f"s_load_dwordx16 {sr(S_X,16)}, s[0:1], 0")
    a(f"v_lshrrev_b32 v{V_T0}, 6, v0")
    a(f"v_and_b32 v{V_LANE}, 63, v0")
    a(f"v_readfirstlane_b32 s{S_WAVE}, v{V_T0}")
    a(f"s_and_b32 s{S_K}, s2, 7")
    a(f"s_lshr_b32 s{S_Q}, s2, 3")
    a(f"s_lshr_b32 s{S_B}, s{S_K}, 2")
    a(f"s_and_b32 s{S_NT}, s{S_K}, 3")
    a(f"s_lshl_b32 s{S_NT}, s{S_NT}, 1")
    a(f"s_lshr_b32 s{S_T0}, s{S_Q}, 4")
    a(f"s_add_u32 s{S_NT}, s{S_NT}, s{S_T0}")
    a(f"s_and_b32 s{S_MT}, s{S_Q}, 15")
    a(f"s_and_b32 s{S_WV}, s{S_WAVE}, 7")
    a(f"v_lshrrev_b32 v{V_T0}, 3, v{V_LANE}")
    a(f"v_and_b32 v{V_T1}, 7, v{V_LANE}")
    a(f"v_lshlrev_b32 v{V_T2}, 10, v{V_T0}")
    a(f"v_lshl_add_u32 v{V_T2}, v{V_T1}, 4, v{V_T2}")
    a(f"s_lshl_b32 s{S_T0}, s{S_WV}, 13")
    a(f"v_add_u32 v{V_XOFF}, s{S_T0}, v{V_T2}")
    a(f"s_and_b32 s{S_T1}, s{S_WV}, 1")
    a(f"s_add_u32 s{S_T2}, s{S_T1}, 32")
    a(f"s_lshl_b32 s{S_T3}, s{S_T2}, 13")
    a(f"v_add_u32 v{V_XOFF5}, s{S_T3}, v{V_T2}")
    a(f"s_mul_i32 s{S_XM05}, s{S_T2}, {XBLK}")
    a(f"s_mul_i32 s{S_XM0}, s{S_WV}, {XBLK}")
    a(f"v_bfe_u32 v{V_T2}, v{V_LANE}, 4, 1")
    a(f"s_lshl_b32 s{S_T1}, s{S_T1}, 1")
    a(f"v_or_b32 v{V_T2}, s{S_T1}, v{V_T2}")
    a(f"v_lshlrev_b32 v{V_T2}, 1, v{V_T2}")
    a(f"v_xor_b32 v{V_T2}, v{V_T2}, v{V_T1}")
    a(f"v_lshlrev_b32 v{V_WOFF}, 10, v{V_T0}")
    a(f"v_lshl_add_u32 v{V_WOFF}, v{V_T2}, 4, v{V_WOFF}")
    a(f"s_lshl_b32 s{S_T1}, s{S_NT}, 7")
    a(f"s_add_u32 s{S_T1}, s{S_T1}, s{S_T0}")
    a(f"v_add_u32 v{V_WOFF}, s{S_T1}, v{V_WOFF}")
    a(f"s_lshl_b32 s{S_WM0}, s{S_WV}, 10")
    a(f"s_add_u32 s{S_WM0}, s{S_WM0}, {WRING}")
    a(f"s_mov_b32 s{S_ITW}, s{S_K}")
    stage_regs(a)
    a(f"s_mul_i32 s{S_T0}, s{S_B}, 4096000")
    a(f"s_lshl_b32 s{S_T1}, s{S_MT}, 18")
    a(f"s_add_u32 s{S_T2}, s{S_T0}, s{S_T1}")
    a("s_waitcnt lgkmcnt(0)")
    a(f"s_add_u32 s{SRD_X}, s{S_X}, s{S_T2}")
    a(f"s_addc_u32 s{SRD_X+1}, s{S_X+1}, 0")
    a(f"s_and_b32 s{SRD_X+1}, s{SRD_X+1}, 0xffff")
    a(f"s_sub_u32 s{SRD_X+2}, 4096000, s{S_T1}")
    a(f"s_mov_b32 s{SRD_X+3}, 0x00020000")
    make_srd(a, SRD_W, S_W, W_BYTES)
    a(f"s_cmp_eq_u32 s{S_WAVE}, 8")
    a("s_cbranch_scc1 L_helper")

    q = VQ()
    for j in range(5):
        x_dma(a, 0, j)
        q.issue(('X', 0, j))
    for t in range(NPRE):
        w_dma(a, t)
        q.issue(('W', t))
    a(f"s_lshr_b32 s{S_KH}, s{S_WAVE}, 2")
    a(f"s_and_b32 s{S_NQ}, s{S_WAVE}, 3")
    a(f"s_lshl_b32 s{S_GRP}, s{S_B}, 3")
    a(f"s_add_u32 s{S_GRP}, s{S_GRP}, s{S_NT}")
    a(f"s_mov_b32 s{S_IT}, 0")
    a(f"v_and_b32 v{V_T0}, 15, v{V_LANE}")
    a(f"v_lshrrev_b32 v{V_T1}, 4, v{V_LANE}")
    make_srd(a, SRD_P, S_BI, 1024)
    a(f"s_lshl_b32 s{S_T0}, s{S_NT}, 7")
    a(f"s_lshl_b32 s{S_T1}, s{S_NQ}, 5")
    a(f"s_add_u32 s{S_T1}, s{S_T0}, s{S_T1}")
    a(f"v_lshl_add_u32 v{V_T2}, v{V_T0}, 1, s{S_T1}")
    a(f"buffer_load_ushort v{V_BIAS}, v{V_T2}, {sr(SRD_P,4)}, 0 offen")
    q.issue('bias')
    a(f"v_lshl_add_u32 v{V_T2}, v{V_LANE}, 1, s{S_T0}")
    make_srd(a, SRD_P, S_GA, 1024)
    a(f"buffer_load_ushort v{V_GB}, v{V_T2}, {sr(SRD_P,4)}, 0 offen")
    q.issue('gamma')
    make_srd(a, SRD_P, S_BE, 1024)
    a(f"v_mov_b32 v{V_B}, v{V_T2}")
    make_srd(a, SRD_WS, S_WS, WS_BYTES)
    make_srd(a, SRD_OUT, S_OUT, OUT_BYTES)
    make_srd(a, SRD_DBG, S_DBG, 256)
    a(f"v_mul_u32_u24 v{V_AADDR}, {2*XBLK}, v{V_T0}")
    a(f"s_lshl_b32 s{S_T0}, s{S_KH}, 2")
    a(f"v_add_u32 v{V_T2}, s{S_T0}, v{V_T1}")
    a(f"v_lshl_add_u32 v{V_AADDR}, v{V_T2}, 4, v{V_AADDR}")
    a(f"v_bfe_u32 v{V_T2}, v{V_LANE}, 2, 2")
    a(f"v_lshl_add_u32 v{V_BADDR}, v{V_T1}, 3, v{V_T2}")
    a(f"v_lshlrev_b32 v{V_BADDR}, 7, v{V_BADDR}")
    a(f"v_bfe_u32 v{V_T2}, v{V_LANE}, 3, 2")
    a(f"v_xor_b32 v{V_T2}, s{S_NQ}, v{V_T2}")
    a(f"v_lshl_add_u32 v{V_BADDR}, v{V_T2}, 5, v{V_BADDR}")
    a(f"v_and_b32 v{V_T2}, 3, v{V_LANE}")
    a(f"v_lshl_add_u32 v{V_BADDR}, v{V_T2}, 3, v{V_BADDR}")
    a(f"s_lshl_b32 s{S_T1}, s{S_KH}, 12")
    a(f"s_add_u32 s{S_T1}, s{S_T1}, {WRING}")
    a(f"v_add_u32 v{V_BADDR}, s{S_T1}, v{V_BADDR}")
    a(f"v_add_u32 v{V_BADDR2}, {5*8192}, v{V_BADDR}")
    a(f"s_movk_i32 s{S_NVAL}, 128")
    a(f"s_sub_u32 s{S_T1}, 37, s{S_KH}")
    a(f"s_cmp_eq_u32 s{S_MT}, 15")
    a(f"s_cselect_b32 s{S_NVAL}, 73, s{S_NVAL}")
    a(f"s_cselect_b32 s{S_CNT}, s{S_T1}, 64")
    a(f"v_lshl_add_u32 v{V_T2}, v{V_T1}, 5, s{S_T0}")
    for v in range(16):
        f1, r = v >> 2, v & 3
        a(f"s_sub_i32 s{S_T1}, s{S_NVAL}, {8*r+f1}")
        a(f"v_cmp_gt_i32 {sr(MASKS[v],2)}, s{S_T1}, v{V_T2}")
    a(f"s_lshl_b32 s{S_T0}, s{S_NQ}, 13")
    a(f"s_lshl_b32 s{S_T1}, s{S_KH}, 12")
    a(f"s_add_u32 s{S_T2}, s{S_T0}, s{S_T1}")
    a(f"s_add_u32 s{S_T2}, s{S_T2}, {L_EX}")
    a(f"s_xor_b32 s{S_T3}, s{S_T2}, 4096")
    a(f"v_lshl_add_u32 v{V_T0}, v{V_LANE}, 4, s{S_T3}")
    a(f"v_lshl_add_u32 v{V_T1}, v{V_LANE}, 4, s{S_T2}")
    a(f"buffer_load_ushort v{V_LANE}, v{V_B}, {sr(SRD_P,4)}, 0 offen")
    q.issue('beta')
    for i in range(32):
        a(f"v_mov_b32 v{V_ACC+i}, 0")
    n = q.need([('X', 0, j) for j in range(5)] + [('W', t) for t in range(NPRE)])
    a(f"s_waitcnt vmcnt({n})")
    a("s_barrier")
    b_read(a, 0)
    for sig in range(XSW, 15):
        for (par, g) in A_SCHED[sig]:
            a_read(a, par, g, 0)

    waits = {}
    for it in range(4):
        for u in range(30):
            t = 30 * it + u
            s, sig = t // 15, t % 15
            need = [('W', t + 1)] if t + 1 >= NPRE else []
            if sig == XSW:
                need += [('X', s + 1, j) for j in range(5)]
            n = q.need(need)
            if n is not None:
                waits[u] = min(waits.get(u, 99), n)
            q.issue(('W', t + NSLOT))
            if sig in X_SCHED:
                q.issue(('X', s + X_SCHED[sig][0], X_SCHED[sig][1]))

    stamp(a, 2)
    a.label("L_loop")
    for u in range(30):
        srel, sig = u // 15, u % 15
        par, j = (0, sig) if sig < 8 else (1, sig - 8)
        a.c(f"step u={u} stage_rel={srel} sig={sig} tap={tap_of(sig)}")
        a(f"s_waitcnt vmcnt({waits[u]}) lgkmcnt(0)")
        mfma(a, 0, par, j + 0, u)
        mfma(a, 1, par, j + 1, u)
        a("s_barrier")
        b_read(a, u + 1)
        mfma(a, 2, par, j + 2, u)
        mfma(a, 3, par, j + 3, u)
        if u == 30 - NSLOT:
            a(f"s_cmp_eq_u32 s{S_IT}, 3")
            a(f"s_cselect_b32 s{SRD_W+2}, 0, s{SRD_W+2}")
        w_dma(a, u + NSLOT)
        mfma(a, 4, par, j + 4, u)
        rd = A_SCHED[sig]
        buf = (srel + (1 if sig >= XSW else 0)) & 1
        a_read(a, rd[0][0], rd[0][1], buf)
        mfma(a, 5, par, j + 5, u)
        if len(rd) > 1:
            a_read(a, rd[1][0], rd[1][1], buf)
        mfma(a, 6, par, j + 6, u)
        if u == XSW:
            a(f"s_cmp_eq_u32 s{S_IT}, 3")
            a(f"s_cselect_b32 s{SRD_X+2}, 0, s{SRD_X+2}")
        if sig in X_SCHED:
            x_dma(a, srel + X_SCHED[sig][0], X_SCHED[sig][1])
        mfma(a, 7, par, j + 7, u)
    a(f"s_add_u32 s{S_ITW}, s{S_ITW}, 2")
    stage_regs(a)
    a(f"s_add_u32 s{S_IT}, s{S_IT}, 1")
    a(f"s_cmp_lt_u32 s{S_IT}, 4")
    a("s_cbranch_scc1 L_loop")

    a.c("epilogue")
    stamp(a, 3)
    stampe(a, 1)
    P = V_E
    Y = V_E + 16
    T = V_E + 32
    VS, VM2 = V_O, V_O + 1
    U0, U1, U2, U3 = V_O + 2, V_O + 3, V_O + 4, V_O + 5
    U4, U5 = V_O + 6, V_O + 7
    ST = V_O + 8
    UM = V_O + 40
    OA0, OA1 = V_O + 42, V_O + 43
    a("s_waitcnt lgkmcnt(0)")
    a(f"s_cmp_eq_u32 s{S_KH}, 0")
    a("s_cbranch_scc0 L_ex1")
    for f in range(4):
        a(f"ds_write_b128 v{V_T0}, {vr(V_ACC+16+4*f,4)} offset:{f*1024}")
    a("s_branch L_ex2")
    a.label("L_ex1")
    for f in range(4):
        a(f"ds_write_b128 v{V_T0}, {vr(V_ACC+4*f,4)} offset:{f*1024}")
    a("s_nop 1")
    for v in range(16):
        a(f"v_mov_b32 v{V_ACC+v}, v{V_ACC+16+v}")
    a.label("L_ex2")
    a(f"v_lshl_or_b32 v{V_GB}, v{V_LANE}, 16, v{V_GB}")
    a(f"v_mbcnt_lo_u32_b32 v{V_LANE}, -1, 0")
    a(f"v_mbcnt_hi_u32_b32 v{V_LANE}, -1, v{V_LANE}")
    a(f"v_lshlrev_b32 v{V_BIAS}, 16, v{V_BIAS}")
    a(f"v_and_b32 v{U0}, 15, v{V_LANE}")
    a(f"s_lshl_b32 s{S_T0}, s{S_NQ}, 6")
    a(f"s_add_u32 s{S_T0}, s{S_T0}, {L_YT}")
    a(f"v_lshl_add_u32 v{U1}, v{U0}, 2, s{S_T0}")
    a(f"v_lshl_add_u32 v{U1}, v{V_T2}, 8, v{U1}")
    a(f"s_lshl_b32 s{S_T0}, s{S_KH}, 9")
    a(f"s_lshl_b32 s{S_T1}, s{S_NQ}, 7")
    a(f"s_add_u32 s{S_T0}, s{S_T0}, s{S_T1}")
    a(f"v_lshl_add_u32 v{U2}, v{U0}, 3, s{S_T0}")
    a(f"v_cvt_f32_u32 v{U3}, s{S_CNT}")
    a(f"v_rcp_f32 v{U3}, v{U3}")
    for v in range(0, 16, 2):
        pk(a, "add", Y + v, V_ACC + v, V_BIAS, mods="op_sel_hi:[1,0]")
    a("s_waitcnt vmcnt(0) lgkmcnt(0)")
    a("s_barrier")
    for f in range(4):
        a(f"ds_read_b128 {vr(P+4*f,4)}, v{V_T1} offset:{f*1024}")
    for f in range(4):
        a(f"s_waitcnt lgkmcnt({3-f})")
        pk(a, "add", Y + 4 * f, Y + 4 * f, P + 4 * f)
        pk(a, "add", Y + 4 * f + 2, Y + 4 * f + 2, P + 4 * f + 2)
    for v in range(16):
        a(f"v_cndmask_b32 v{T+v}, 0, v{Y+v}, {sr(MASKS[v],2)}")
    for st in (8, 4, 2):
        for v in range(0, st, 2):
            pk(a, "add", T + v, T + v, T + v + st)
    a(f"v_add_f32 v{VS}, v{T}, v{T+1}")
    cross4_sum(a, VS, U4, U5)
    a(f"v_mul_f32 v{UM}, v{VS}, v{U3}")
    for v in range(0, 16, 2):
        pk(a, "add", T + v, Y + v, UM, mods="op_sel_hi:[1,0] neg_lo:[0,1] neg_hi:[0,1]")
    for v in range(16):
        a(f"v_cndmask_b32 v{T+v}, 0, v{T+v}, {sr(MASKS[v],2)}")
    for v in range(0, 8, 2):
        pk(a, "mul", T + v, T + v, T + v)
    for v in range(0, 8, 2):
        pk(a, "fma", T + v, T + 8 + v, T + 8 + v, T + v)
    for st in (4, 2):
        for v in range(0, st, 2):
            pk(a, "add", T + v, T + v, T + v + st)
    a(f"v_add_f32 v{VM2}, v{T}, v{T+1}")
    cross4_sum(a, VM2, U4, U5)
    a(f"ds_write_b64 v{U2}, {vr(VS,2)} offset:{L_ST}")
    for v in range(16):
        f1, r = v >> 2, v & 3
        a(f"ds_write_b32 v{U1}, v{Y+v} offset:{(8*r+f1)*256}")
    a(f"v_lshrrev_b32 v{U0}, 3, v{V_LANE}")
    a(f"v_and_b32 v{U1}, 7, v{V_LANE}")
    a(f"s_lshl_b32 s{S_T0}, s{S_WAVE}, 12")
    a(f"s_add_u32 s{S_T0}, s{S_T0}, {L_YT}")
    a(f"v_lshl_add_u32 v{U2}, v{U0}, 8, s{S_T0}")
    a(f"v_lshl_add_u32 v{U2}, v{U1}, 5, v{U2}")
    a("s_waitcnt lgkmcnt(0)")
    a("s_barrier")
    Z = V_E
    a(f"s_cmp_lg_u32 s{S_WAVE}, 0")
    a("s_cbranch_scc1 L_notw0")
    stampe(a, 2)
    a(f"v_lshlrev_b32 v{U3}, 3, v{V_LANE}")
    a(f"ds_read_b64 {vr(T,2)}, v{U3} offset:{L_ST}")
    a(f"ds_read_b64 {vr(T+2,2)}, v{U3} offset:{L_ST+512}")
    a(f"s_lshl_b32 s{S_T0}, s{S_GRP}, 2")
    a(f"v_mov_b32 v{U5}, s{S_T0}")
    a(f"buffer_load_dword v{T+12}, v{U5}, {sr(SRD_DBG,4)}, 0 offen offset:{CNT_OFF} sc1")
    a(f"s_cmp_eq_u32 s{S_MT}, 15")
    a(f"s_cselect_b32 s{S_T0}, 37, 64")
    a(f"s_cselect_b32 s{S_T1}, 36, 64")
    a(f"v_cvt_f32_u32 v{T+4}, s{S_T0}")
    a(f"v_cvt_f32_u32 v{T+5}, s{S_T1}")
    a(f"v_cvt_f32_u32 v{T+6}, s{S_NVAL}")
    a(f"v_rcp_f32 v{T+7}, v{T+4}")
    a(f"v_rcp_f32 v{T+8}, v{T+5}")
    a(f"v_rcp_f32 v{T+9}, v{T+6}")
    a(f"s_lshl_b32 s{S_T0}, s{S_GRP}, 13")
    a(f"s_lshl_b32 s{S_T1}, s{S_MT}, 9")
    a(f"s_add_u32 s{S_T1}, s{S_T1}, s{S_T0}")
    a(f"v_add_u32 v{U4}, s{S_T0}, v{U3}")
    a(f"v_add_u32 v{U3}, s{S_T1}, v{U3}")
    a("s_waitcnt lgkmcnt(0)")
    a(f"v_add_f32 v{VS}, v{T}, v{T+2}")
    a(f"v_mul_f32 v{T+9}, v{VS}, v{T+9}")
    a(f"v_add_f32 v{VM2}, v{T+1}, v{T+3}")
    a(f"v_fma_f32 v{T+10}, v{T}, v{T+7}, -v{T+9}")
    a(f"v_fma_f32 v{T+11}, v{T+2}, v{T+8}, -v{T+9}")
    a(f"v_mul_f32 v{T+10}, v{T+10}, v{T+10}")
    a(f"v_mul_f32 v{T+11}, v{T+11}, v{T+11}")
    a(f"v_fmac_f32 v{VM2}, v{T+10}, v{T+4}")
    a(f"v_fmac_f32 v{VM2}, v{T+11}, v{T+5}")
    a(f"v_max_f32 v{VM2}, 0, v{VM2}")
    a(f"v_and_b32 v{VM2}, 0x7fffffff, v{VM2}")
    a(f"buffer_store_dwordx2 {vr(VS,2)}, v{U3}, {sr(SRD_WS,4)}, 0 offen sc1")
    a(f"s_mov_b32 s{S_T2}, 0")
    a(f"s_movk_i32 s{S_T3}, 4096")
    a("s_waitcnt vmcnt(1)")
    a.label("L_pollA")
    a(f"v_readfirstlane_b32 s{S_T1}, v{T+12}")
    a(f"s_add_u32 s{S_T2}, s{S_T2}, 1")
    a(f"s_cmp_ge_u32 s{S_T1}, 16")
    a("s_cbranch_scc1 L_pollB")
    a(f"buffer_load_dword v{T+12}, v{U5}, {sr(SRD_DBG,4)}, 0 offen offset:{CNT_OFF} sc1")
    a("s_waitcnt vmcnt(0)")
    a(f"s_cmp_lt_u32 s{S_T2}, 0x400000")
    a("s_cbranch_scc1 L_pollA")
    a.label("L_pollB")
    for i in range(16):
        so = "0" if i < 8 else f"s{S_T3}"
        a(f"buffer_load_dwordx2 {vr(ST+2*i,2)}, v{U4}, {sr(SRD_WS,4)}, {so} offen offset:{(i%8)*512} sc1")
    a("s_waitcnt vmcnt(0)")
    a(f"v_or3_b32 v{T}, v{ST+1}, v{ST+3}, v{ST+5}")
    a(f"v_or3_b32 v{T+1}, v{ST+7}, v{ST+9}, v{ST+11}")
    a(f"v_or3_b32 v{T+2}, v{ST+13}, v{ST+15}, v{ST+17}")
    a(f"v_or3_b32 v{T+3}, v{ST+19}, v{ST+21}, v{ST+23}")
    a(f"v_or3_b32 v{T+4}, v{ST+25}, v{ST+27}, v{ST+29}")
    a(f"v_or3_b32 v{T}, v{T}, v{T+1}, v{ST+31}")
    a(f"v_or3_b32 v{T+2}, v{T+2}, v{T+3}, v{T+4}")
    a(f"v_or_b32 v{T}, v{T}, v{T+2}")
    a(f"v_cmp_gt_i32 vcc, 0, v{T}")
    a(f"s_add_u32 s{S_T2}, s{S_T2}, 1")
    a("s_nop 3")
    a("s_cbranch_vccz L_got")
    a(f"s_cmp_lt_u32 s{S_T2}, 0x400000")
    a("s_cbranch_scc1 L_pollB")
    a.label("L_got")
    stamp(a, 4)
    stampe(a, 3)
    for i in range(8):
        pk(a, "add", T + 2 * i, ST + 2 * i, ST + 2 * i + 16)
    for st in (4, 2, 1):
        for v in range(st):
            pk(a, "add", T + 2 * v, T + 2 * v, T + 2 * (v + st))
    a(f"v_mul_f32 v{T}, {f2u(1.0/1993.0):#x}, v{T}")
    a(f"s_mov_b32 s{S_T0}, {f2u(1.0/128.0):#x}")
    a(f"s_mov_b32 s{S_T1}, {f2u(1.0/73.0):#x}")
    for i in range(16):
        a(f"v_fma_f32 v{ST+2*i}, v{ST+2*i}, s{S_T0 if i < 15 else S_T1}, -v{T}")
    for i in range(4):
        a(f"v_mul_f32 v{T+2+i}, v{ST+2*i}, v{ST+2*i}")
    for i in range(4, 15):
        a(f"v_fmac_f32 v{T+2+(i&3)}, v{ST+2*i}, v{ST+2*i}")
    a(f"v_mul_f32 v{ST+30}, v{ST+30}, v{ST+30}")
    a(f"v_add_f32 v{T+2}, v{T+2}, v{T+3}")
    a(f"v_add_f32 v{T+4}, v{T+4}, v{T+5}")
    a(f"v_fmac_f32 v{T+1}, 0x42920000, v{ST+30}")
    a(f"v_add_f32 v{T+2}, v{T+2}, v{T+4}")
    a(f"v_fmac_f32 v{T+1}, 0x43000000, v{T+2}")
    a(f"v_mov_b32 v{T+2}, {f2u(1e-5):#x}")
    a(f"v_fmac_f32 v{T+2}, {f2u(1.0/1993.0):#x}, v{T+1}")
    a(f"v_rsq_f32 v{T+2}, v{T+2}")
    a(f"v_lshlrev_b32 v{T+3}, 16, v{V_GB}")
    a(f"v_and_b32 v{T+4}, 0xffff0000, v{V_GB}")
    a(f"v_lshlrev_b32 v{U3}, 2, v{V_LANE}")
    a(f"v_mul_f32 v{T+2}, v{T+2}, v{T+3}")
    a(f"v_fma_f32 v{T+3}, -v{T}, v{T+2}, v{T+4}")
    a(f"ds_write_b32 v{U3}, v{T+2} offset:{L_SC}")
    a(f"ds_write_b32 v{U3}, v{T+3} offset:{L_SH}")
    a.label("L_notw0")
    for i2 in range(2):
        for half in range(2):
            a(f"ds_read_b128 {vr(Z+8*i2+4*half,4)}, v{U2} offset:{i2*2048+half*16}")
    a(f"s_lshl_b32 s{S_T0}, s{S_WAVE}, 4")
    a(f"s_lshl_b32 s{S_T1}, s{S_MT}, 7")
    a(f"s_add_u32 s{S_T0}, s{S_T0}, s{S_T1}")
    a(f"v_add_u32 v{U0}, s{S_T0}, v{U0}")
    a(f"v_add_u32 v{U3}, 8, v{U0}")
    a(f"s_mul_i32 s{S_T0}, s{S_B}, 2040832")
    a(f"s_lshl_b32 s{S_T1}, s{S_NT}, 7")
    a(f"s_add_u32 s{S_T0}, s{S_T0}, s{S_T1}")
    a(f"v_lshl_add_u32 v{U4}, v{U1}, 4, s{S_T0}")
    a(f"v_lshl_add_u32 v{OA0}, v{U0}, 10, v{U4}")
    a(f"v_lshl_add_u32 v{OA1}, v{U3}, 10, v{U4}")
    a(f"v_mov_b32 v{U4}, 0x7f000000")
    a(f"s_movk_i32 s{S_T0}, 1993")
    a(f"v_cmp_gt_u32 vcc, s{S_T0}, v{U0}")
    a(f"v_cmp_gt_u32 {sr(MASKS[0],2)}, s{S_T0}, v{U3}")
    a(f"v_lshlrev_b32 v{U1}, 5, v{U1}")
    a(f"v_cndmask_b32 v{OA0}, v{U4}, v{OA0}, vcc")
    a(f"v_cndmask_b32 v{OA1}, v{U4}, v{OA1}, {sr(MASKS[0],2)}")
    k0 = math.sqrt(2.0 / math.pi)
    c0 = -2.0 * k0 * math.log2(math.e)
    c1 = c0 * 0.044715
    C0, C1, ONE = V_O + 8, V_O + 10, V_O + 12
    a(f"v_mov_b32 v{C0}, {f2u(c0):#x}")
    a(f"v_mov_b32 v{C1}, {f2u(c1):#x}")
    a(f"v_mov_b32 v{ONE}, 1.0")
    a("s_waitcnt lgkmcnt(0)")
    a("s_barrier")
    SC, SH, E = V_E + 16, V_E + 24, V_E + 32
    a(f"ds_read_b128 {vr(SC,4)}, v{U1} offset:{L_SC}")
    a(f"ds_read_b128 {vr(SH,4)}, v{U1} offset:{L_SH}")
    a(f"ds_read_b128 {vr(SC+4,4)}, v{U1} offset:{L_SC+16}")
    a(f"ds_read_b128 {vr(SH+4,4)}, v{U1} offset:{L_SH+16}")
    a("s_waitcnt lgkmcnt(0)")
    for v in range(0, 16, 2):
        pk(a, "fma", Z + v, Z + v, SC + (v & 7), SH + (v & 7))
    for v in range(0, 16, 2):
        pk(a, "mul", E + v, Z + v, Z + v)
    for v in range(0, 16, 2):
        pk(a, "fma", E + v, E + v, C1, C0, mods="op_sel_hi:[1,0,0]")
    for v in range(0, 16, 2):
        pk(a, "mul", E + v, E + v, Z + v)
    for v in range(16):
        a(f"v_exp_f32 v{E+v}, v{E+v}")
    for v in range(0, 16, 2):
        pk(a, "add", E + v, E + v, ONE, mods="op_sel_hi:[1,0]")
    for v in range(16):
        a(f"v_rcp_f32 v{E+v}, v{E+v}")
    for v in range(0, 16, 2):
        pk(a, "mul", Z + v, Z + v, E + v)
    for v in range(8):
        a(f"v_cvt_pk_bf16_f32 v{E+v}, v{Z+2*v}, v{Z+2*v+1}")
    a(f"buffer_store_dwordx4 {vr(E,4)}, v{OA0}, {sr(SRD_OUT,4)}, 0 offen {OFLAG}")
    a(f"buffer_store_dwordx4 {vr(E+4,4)}, v{OA1}, {sr(SRD_OUT,4)}, 0 offen {OFLAG}")
    if DIAG:
        a(f"s_cmp_lg_u32 s{S_WAVE}, 0")
        a("s_cbranch_scc1 L_end")
        a("s_waitcnt vmcnt(0)")
        stampe(a, 4)
        stamp(a, 5, True)
        a("s_waitcnt lgkmcnt(0)")
        if DIAGH:
            a(f"v_mov_b32 v{V_T0}, 0")
            a(f"v_cmp_eq_u32 vcc, 0, v{V_LANE}")
            a("s_nop 1")
            a("s_and_saveexec_b64 s[74:75], vcc")
            a(f"v_mov_b32 v{V_T1}, s{STAMPS[5]}")
            a(f"buffer_atomic_umax v{V_T1}, v{V_T0}, {sr(SRD_DBG,4)}, 0 offen sc1")
            a(f"s_not_b32 s{S_T0}, s{STAMPS[0]}")
            a(f"v_mov_b32 v{V_T1}, s{S_T0}")
            a(f"buffer_atomic_umax v{V_T1}, v{V_T0}, {sr(SRD_DBG,4)}, 0 offen offset:4 sc1")
            a(f"v_mov_b32 v{V_T1}, s{STAMPS[0]}")
            a(f"buffer_atomic_umax v{V_T1}, v{V_T0}, {sr(SRD_DBG,4)}, 0 offen offset:8 sc1")
            for i in range(3):
                a(f"s_sub_u32 s{S_T0}, s{STAMPS[i+2]}, s{STAMPS[i+1]}")
                a(f"v_mov_b32 v{V_T1}, s{S_T0}")
                a(f"buffer_atomic_umax v{V_T1}, v{V_T0}, {sr(SRD_DBG,4)}, 0 offen offset:{12+4*i} sc1")
                a(f"buffer_atomic_add v{V_T1}, v{V_T0}, {sr(SRD_DBG,4)}, 0 offen offset:{24+4*i} sc1")
            a("s_mov_b64 exec, s[74:75]")
        a(f"s_lshl_b32 s{S_T0}, s2, 6")
        a(f"s_add_u32 s{S_T0}, s{S_T0}, 0x1000000")
        a(f"v_mov_b32 v{V_T0}, s{S_T0}")
        for i in range(6):
            a(f"v_mov_b32 v{V_T1}, s{STAMPS[i]}")
            a(f"buffer_store_dword v{V_T1}, v{V_T0}, {sr(SRD_WS,4)}, 0 offen offset:{4*i}")
    a.label("L_end")
    a("s_endpgm")

    a.label("L_helper")
    hq = VQ()
    V_WOFF_ODD = 12
    a(f"v_xor_b32 v{V_WOFF_ODD}, 64, v{V_WOFF}")

    def h_w(t):
        slot, sig = t % NSLOT, t % 15
        for w in range(8):
            a(f"s_mov_b32 m0, {WRING + slot*8192 + w*1024}")
            a(f"s_add_u32 s{S_T0}, s{S_SW}, {tap_of(sig)*524288 + w*8192}")
            a(f"buffer_load_dwordx4 v{V_WOFF if w % 2 == 0 else V_WOFF_ODD}, {sr(SRD_W,4)}, s{S_T0} offen lds")
            hq.issue(('W', t, w))

    def h_x(d0, d1):
        for d in range(d0, d1):
            a(f"s_mov_b32 m0, {XBUF + d*XBLK}")
            a(f"s_add_u32 s{S_T0}, s{S_SX+1}, {d*8192}")
            a(f"buffer_load_dwordx4 v{V_XOFF}, {sr(SRD_X,4)}, s{S_T0} offen lds")
            hq.issue(('X', d))

    def h_bar(u):
        need = [('W', u + 1, w) for w in range(8)]
        if u == XSW:
            need += [('X', d) for d in range(32)]
        n = hq.need(need)
        if n is not None:
            a(f"s_waitcnt vmcnt({n})")
            hq.waited = max(hq.waited, len(hq.q) - 1 - n)
        a("s_barrier")

    todo = [('w', t) for t in range(NPRE, NSLOT)] + [('x', 8 * i) for i in range(4)]
    for _ in range(2):
        k, v = todo.pop(0)
        h_w(v)
    make_srd(a, SRD_WS, S_WS, WS_BYTES)
    make_srd(a, SRD_DBG, S_DBG, 256)
    make_srd(a, SRD_P, S_X, X_BYTES)
    a(f"s_lshl_b32 s{S_GRP}, s{S_B}, 3")
    a(f"s_add_u32 s{S_GRP}, s{S_GRP}, s{S_NT}")
    a(f"s_lshl_b32 s{S_T0}, s{S_GRP}, 13")
    a(f"s_lshl_b32 s{S_T1}, s{S_MT}, 9")
    a(f"s_add_u32 s{S_T1}, s{S_T1}, s{S_T0}")
    a(f"v_lshl_add_u32 v{V_T0}, v{V_LANE}, 3, s{S_T1}")
    a("v_mov_b32 v14, 0")
    a("v_mov_b32 v15, -1.0")
    a(f"buffer_store_dwordx2 v[14:15], v{V_T0}, {sr(SRD_WS,4)}, 0 offen sc1")
    hq.issue('clr')
    a(f"v_mov_b32 v{V_T2}, 0x7f000000")
    a(f"v_lshlrev_b32 v{V_T1}, 10, v{V_LANE}")
    a(f"v_add_u32 v{V_T1}, 384, v{V_T1}")
    a(f"s_mul_i32 s{S_T2}, s2, {32*1024}")
    a(f"s_mul_i32 s{S_T3}, s2, {30*1024}")
    a(f"v_cmp_gt_u32 vcc, 32, v{V_LANE}")
    a(f"v_cmp_gt_u32 s[72:73], 30, v{V_LANE}")
    a(f"s_lshl_b32 s{S_T1}, s{S_GRP}, 2")
    a(f"v_mov_b32 v18, s{S_T1}")
    a(f"v_cndmask_b32 v16, v{V_T2}, v{V_T1}, vcc")
    a(f"v_cndmask_b32 v17, v{V_T2}, v{V_T1}, s[72:73]")
    a("v_mov_b32 v19, 1")
    a(f"buffer_load_dword v20, v17, {sr(SRD_W,4)}, s{S_T3} offen")
    hq.issue('t0')
    a(f"buffer_load_dword v21, v16, {sr(SRD_P,4)}, s{S_T2} offen")
    hq.issue('t1')
    k, v = todo.pop(0)
    h_w(v)
    h_bar(-1)
    u = 0
    while todo:
        k, v = todo.pop(0)
        if k == 'w':
            h_w(v)
        else:
            h_x(v, v + 8)
        h_bar(u)
        u += 1
    assert hq.waited > hq.q.index('clr')
    a(f"v_cmp_eq_u32 vcc, 0, v{V_LANE}")
    a("s_nop 1")
    a("s_and_saveexec_b64 s[74:75], vcc")
    a(f"buffer_atomic_add v19, v18, {sr(SRD_DBG,4)}, 0 offen offset:{CNT_OFF} sc1")
    hq.issue('atom')
    a("s_mov_b64 exec, s[74:75]")
    while u <= XSW:
        h_bar(u)
        u += 1
    a(f"s_mov_b32 s{S_T0}, 0")
    a.label("L_hloop")
    a("s_barrier")
    a(f"s_add_u32 s{S_T0}, s{S_T0}, 1")
    a(f"s_cmp_lt_u32 s{S_T0}, 30")
    a("s_cbranch_scc1 L_hloop")
    a("s_waitcnt vmcnt(0)")
    a("s_endpgm")


def kd(name, nvgpr):
    acc = (nvgpr + 3) // 4 * 4
    return f""".p2align 6
.amdhsa_kernel {name}
  .amdhsa_next_free_vgpr {nvgpr}
  .amdhsa_next_free_sgpr 102
  .amdhsa_accum_offset {acc}
  .amdhsa_group_segment_fixed_size 0
  .amdhsa_kernarg_size 64
  .amdhsa_user_sgpr_count 2
  .amdhsa_user_sgpr_kernarg_segment_ptr 1
  .amdhsa_system_sgpr_workgroup_id_x 1
  .amdhsa_float_denorm_mode_32 3
.end_amdhsa_kernel
"""


def main():
    args = [x for x in ARGS if not x.startswith("-")]
    out = args[0] if args else f"cdna_kernels/{NAME}.s"
    hdr = f"""; conv stem (HuBERT): conv1d(k=15,s=2) as implicit GEMM + per-channel norm over time + GELU, one fused kernel
; @launch grid=(256,1,1) block=(576,1,1) lds={LDS1}
.amdgcn_target "amdgcn-amd-amdhsa--gfx950"
.text
"""
    a = Asm()
    gen_kernel(a)
    txt = hdr + a.text() + '.section .rodata,"a"\n' + kd(NAME + "_kernel", NVGPR)
    open(out, "w").write(txt)


if __name__ == "__main__":
    main()
```

```python
import sys
import struct
import math

NAME = "standalone__self_sup_conv_stem_hubert__speech"
ARGS = sys.argv[1:]
DIAG = "--diag" in ARGS
DIAGE = "--diage" in ARGS
DIAGI = "--diagi" in ARGS
DIAGW = "--diagw" in ARGS
DIAGH = "--diagh" in ARGS
if DIAGH:
    DIAG = True
CNT_OFF = 64 if DIAGH else 0
OFLAG = "sc1"
for _a in ARGS:
    if _a.startswith("--oflag="):
        OFLAG = _a[8:].replace("+", " ")
STAG = "--stag" in ARGS
AB_NODMA = "--ab_nodma" in ARGS
AB_NOREAD = "--ab_noread" in ARGS
AB_NOBAR = "--ab_nobar" in ARGS
AB_ZDMA = "--ab_zdma" in ARGS
AB_NOA = "--ab_noa" in ARGS
ROTV = "k"
for _a in ARGS:
    if _a.startswith("--rotv="):
        ROTV = _a[7:]
L2PF = "--l2pf" in ARGS
PFFLAG = "sc1" if "--pfsc1" in ARGS else ""
FINE = "--fine" in ARGS
FINE_TAIL = 0
for _a in ARGS:
    if _a.startswith("--ftail="):
        FINE_TAIL = int(_a[8:])
FRONT = 0
for _a in ARGS:
    if _a.startswith("--front="):
        FRONT = int(_a[8:])
TWO = 2 if "--two2" in ARGS else (1 if "--two" in ARGS else 0)
DSPLIT = 2 if "--dsplit2" in ARGS else (1 if "--dsplit" in ARGS else 0)
AB_NOWAIT = "--ab_nowait" in ARGS
INLOOP = [False]
P2 = 9
for _a in ARGS:
    if _a.startswith("--p2="):
        P2 = int(_a[5:])
NPRE = 4
for _a in ARGS:
    if _a.startswith("--npre="):
        NPRE = int(_a[7:])

X_BYTES = 2 * 4000 * 512 * 2
W_BYTES = 15 * 512 * 512 * 2
OUT_BYTES = 2 * 1993 * 512 * 2
WS_BYTES = 268435456
XBLK = 1040
XBUF = 34 * XBLK
WRING = 2 * XBUF
NSLOT = 10
LDS1 = WRING + NSLOT * 8192
L_ST, L_SC, L_SH, L_EX, L_YT = 0, 1024, 1280, 2048, XBUF


def f2u(x):
    return struct.unpack("<I", struct.pack("<f", x))[0]


class Asm:
    def __init__(self):
        self.lines = []

    def __call__(self, s):
        if INLOOP[0] and "--ab_salu" in ARGS and s.startswith("buffer_load_dwordx4"):
            return
        if INLOOP[0] and "--ab_nosalu" in ARGS and (s.startswith("s_add_u32 m0") or s.startswith("s_add_u32 s57") or s.startswith("s_add_u32 s58") or s.startswith("s_mov_b32 s58")):
            return
        if INLOOP[0] and "--ab_dw" in ARGS and s.startswith("buffer_load_dwordx4"):
            s = s.replace("buffer_load_dwordx4", "buffer_load_dword")
        self.lines.append("    " + s)

    def label(self, l):
        self.lines.append(l + ":")

    def c(self, s):
        self.lines.append("    ; " + s)

    def text(self):
        return "\n".join(self.lines) + "\n"


def vr(a, n=1):
    return f"v{a}" if n == 1 else f"v[{a}:{a+n-1}]"


def sr(a, n=1):
    return f"s{a}" if n == 1 else f"s[{a}:{a+n-1}]"


V_GB = 0
V_LANE, V_T0, V_T1, V_T2 = 1, 2, 3, 4
V_BADDR2, V_AADDR, V_BADDR, V_WOFF, V_XOFF, V_BIAS, V_XOFF5 = 5, 6, 7, 8, 9, 10, 11
V_E = 12
V_O = 72
V_B = 120
V_ACC = 136
NVGPR = 168

S_X, S_W, S_BI, S_GA = 4, 6, 8, 10
S_BE, S_OUT, S_DBG, S_WS = 12, 14, 16, 18
SRD_X, SRD_W, SRD_WS, SRD_P = 20, 24, 28, 32
SRD_OUT, SRD_DBG = 36, 40
S_K, S_Q, S_B, S_NT, S_MT = 44, 45, 46, 47, 48
S_WAVE, S_KH, S_NQ, S_WM0, S_XM0, S_XM05 = 49, 50, 51, 52, 53, 54
S_ITW, S_IT, S_T0, S_T1, S_T2, S_T3 = 55, 56, 57, 58, 59, 60
S_SW = 61
S_SX = 65
S_NVAL, S_CNT, S_GRP = 69, 70, 71
MASKS = list(range(4, 20, 2)) + list(range(72, 88, 2))
S_WV = 88
STAMPS = [90, 92, 94, 96, 98, 100]


def stampe(a, i):
    if DIAGE:
        a(f"s_memtime s[{STAMPS[i]}:{STAMPS[i]+1}]")


def stamp(a, i, rt=False):
    if DIAGI and not rt:
        if i == 2:
            a(f"s_memtime s[{STAMPS[1]}:{STAMPS[1]+1}]")
        return
    if DIAGW and not rt:
        if i == 2:
            a(f"s_memtime s[{STAMPS[1]}:{STAMPS[1]+1}]")
            a(f"s_memrealtime s[{STAMPS[2]}:{STAMPS[2]+1}]")
        if i == 3:
            a(f"s_memtime s[{STAMPS[3]}:{STAMPS[3]+1}]")
            a(f"s_memrealtime s[{STAMPS[4]}:{STAMPS[4]+1}]")
        return
    if DIAG and (rt or not DIAGE):
        a(f"s_mem{'real' if rt else ''}time s[{STAMPS[i]}:{STAMPS[i]+1}]")


def frag(par, g):
    if par == 0 or g < 2:
        return V_E + 4 * g
    return V_O + 4 * (g - 2)


def tap_of(sig):
    return 2 * sig if sig < 8 else 2 * (sig - 8) + 1


def make_srd(a, srd, base, nbytes):
    a(f"s_mov_b32 s{srd}, s{base}")
    a(f"s_and_b32 s{srd+1}, s{base+1}, 0xffff")
    a(f"s_mov_b32 s{srd+2}, {nbytes}")
    a(f"s_mov_b32 s{srd+3}, 0x00020000")


class VQ:
    def __init__(self):
        self.q = []
        self.waited = -1

    def issue(self, tag):
        self.q.append(tag)

    def need(self, tags):
        idx = [self.q.index(t) for t in tags if t in self.q]
        if not idx:
            return None
        return len(self.q) - 1 - max(idx)


GROUPS = [(0, 2), (2, 2), (4, 2), (6, 2), (8, 2), (10, 2), (12, 2), (14, 1)]
GSW = 5
A_SCHED = {0: [(0, 9), (0, 10), (0, 11), (0, 12)],
           1: [(0, 13), (0, 14), (1, 2), (1, 3)],
           2: [(1, 0), (1, 1), (1, 4), (1, 5)],
           3: [(1, 6), (1, 7), (1, 8), (1, 9)],
           4: [(1, 10), (1, 11), (1, 12), (1, 13)],
           5: [(0, 0), (0, 1), (0, 2), (0, 3)],
           6: [(0, 4), (0, 5), (0, 6), (0, 7)],
           7: [(0, 8)]}
X_SCHED = {5: [0, 1], 6: [2, 3], 7: [4]}


def breg(gi, k):
    return V_B + 8 * (gi & 1) + 4 * k


def stage_regs(a):
    for rel in range(4):
        a(f"s_add_u32 s{S_T0}, s{S_ITW}, {rel}")
        a(f"s_and_b32 s{S_T0}, s{S_T0}, 7")
        a(f"s_lshl_b32 s{S_SW+rel}, s{S_T0}, 16")
        a(f"s_lshl_b32 s{S_SX+rel}, s{S_T0}, 7")


def a_read(a, par, g, buf):
    if INLOOP[0] and (AB_NOREAD or AB_NOA):
        return
    e = 2 * g + par
    off = buf * XBUF + (e >> 3) * XBLK + (e & 7) * 128
    a(f"ds_read_b128 {vr(frag(par, g), 4)}, v{V_AADDR} offset:{off}")


def b_read(a, t, b):
    if INLOOP[0] and AB_NOREAD:
        return
    slot = t % NSLOT
    va, sl = (V_BADDR, slot) if slot < 5 else (V_BADDR2, slot - 5)
    a(f"ds_read_b64_tr_b16 {vr(b, 2)}, v{va} offset:{sl*8192}")
    a(f"ds_read_b64_tr_b16 {vr(b+2, 2)}, v{va} offset:{sl*8192+512}")


def w_dma(a, trel):
    if INLOOP[0] and AB_NODMA:
        return
    slot = trel % NSLOT
    srel, sig = trel // 15, trel % 15
    a(f"s_add_u32 m0, s{S_WM0}, {slot*8192}")
    a(f"s_add_u32 s{S_T0}, s{S_SW+srel}, {tap_of(sig) * 524288}")
    a(f"buffer_load_dwordx4 v{V_WOFF}, {sr(SRD_W,4)}, s{S_T0} offen lds")


def x_dma(a, srel, j):
    if INLOOP[0] and AB_NODMA:
        return
    buf = srel & 1
    if j < 4:
        a(f"s_add_u32 m0, s{S_XM0}, {buf*XBUF + j*8*XBLK}")
        a(f"s_add_u32 s{S_T1}, s{S_SX+srel}, {j*65536}")
        a(f"buffer_load_dwordx4 v{V_XOFF}, {sr(SRD_X,4)}, s{S_T1} offen lds")
    else:
        a(f"s_add_u32 m0, s{S_XM05}, {buf*XBUF}")
        a(f"s_mov_b32 s{S_T1}, s{S_SX+srel}")
        a(f"buffer_load_dwordx4 v{V_XOFF5}, {sr(SRD_X,4)}, s{S_T1} offen lds")


def mfma(a, f, sig, b):
    acc = V_ACC + 4 * f
    par, j = (0, sig) if sig < 8 else (1, sig - 8)
    g = j + f
    a(f"v_mfma_f32_16x16x32_bf16 {vr(acc,4)}, {vr(frag(par,g),4)}, {vr(b,4)}, {vr(acc,4)}")


def cross4_sum(a, v, t0, t1):
    a(f"v_mov_b32 v{t0}, v{v}")
    a(f"v_mov_b32 v{t1}, v{v}")
    a("s_nop 1")
    a(f"v_permlane32_swap_b32 v{t0}, v{t1}")
    a("s_nop 1")
    a(f"v_add_f32 v{v}, v{t0}, v{t1}")
    a(f"v_mov_b32 v{t0}, v{v}")
    a(f"v_mov_b32 v{t1}, v{v}")
    a("s_nop 1")
    a(f"v_permlane16_swap_b32 v{t0}, v{t1}")
    a("s_nop 1")
    a(f"v_add_f32 v{v}, v{t0}, v{t1}")


def pk(a, op, d, s0, s1, s2=None, mods=""):
    ops = f"{vr(d,2)}, {vr(s0,2)}, {vr(s1,2)}" + (f", {vr(s2,2)}" if s2 is not None else "")
    a(f"v_pk_{op}_f32 {ops} {mods}".rstrip())


def gen_kernel(a):
    kname = NAME + "_kernel"
    a.lines.append(f".globl {kname}")
    a.lines.append(".p2align 8")
    a.lines.append(f".type {kname},@function")
    a.label(kname)
    a("s_cmp_ge_u32 s2, 256")
    a("s_cbranch_scc1 L_end")
    stamp(a, 0, True)
    stamp(a, 1)
    a(f"s_load_dwordx16 {sr(S_X,16)}, s[0:1], 0")
    a(f"v_lshrrev_b32 v{V_T0}, 6, v0")
    a(f"v_and_b32 v{V_LANE}, 63, v0")
    a(f"v_readfirstlane_b32 s{S_WAVE}, v{V_T0}")
    a(f"s_and_b32 s{S_K}, s2, 7")
    a(f"s_lshr_b32 s{S_Q}, s2, 3")
    a(f"s_lshr_b32 s{S_B}, s{S_K}, 2")
    a(f"s_and_b32 s{S_NT}, s{S_K}, 3")
    a(f"s_lshl_b32 s{S_NT}, s{S_NT}, 1")
    a(f"s_lshr_b32 s{S_T0}, s{S_Q}, 4")
    a(f"s_add_u32 s{S_NT}, s{S_NT}, s{S_T0}")
    a(f"s_and_b32 s{S_MT}, s{S_Q}, 15")
    a(f"s_and_b32 s{S_WV}, s{S_WAVE}, 7")
    a(f"v_lshrrev_b32 v{V_T0}, 3, v{V_LANE}")
    a(f"v_and_b32 v{V_T1}, 7, v{V_LANE}")
    a(f"v_lshlrev_b32 v{V_T2}, 10, v{V_T0}")
    a(f"v_lshl_add_u32 v{V_T2}, v{V_T1}, 4, v{V_T2}")
    a(f"s_lshl_b32 s{S_T0}, s{S_WV}, 13")
    a(f"v_add_u32 v{V_XOFF}, s{S_T0}, v{V_T2}")
    a(f"s_and_b32 s{S_T1}, s{S_WV}, 1")
    a(f"s_add_u32 s{S_T2}, s{S_T1}, 32")
    a(f"s_lshl_b32 s{S_T3}, s{S_T2}, 13")
    a(f"v_add_u32 v{V_XOFF5}, s{S_T3}, v{V_T2}")
    a(f"s_mul_i32 s{S_XM05}, s{S_T2}, {XBLK}")
    a(f"s_mul_i32 s{S_XM0}, s{S_WV}, {XBLK}")
    a(f"v_bfe_u32 v{V_T2}, v{V_LANE}, 4, 1")
    a(f"s_lshl_b32 s{S_T1}, s{S_T1}, 1")
    a(f"v_or_b32 v{V_T2}, s{S_T1}, v{V_T2}")
    a(f"v_lshlrev_b32 v{V_T2}, 1, v{V_T2}")
    a(f"v_xor_b32 v{V_T2}, v{V_T2}, v{V_T1}")
    a(f"v_lshlrev_b32 v{V_WOFF}, 10, v{V_T0}")
    a(f"v_lshl_add_u32 v{V_WOFF}, v{V_T2}, 4, v{V_WOFF}")
    a(f"s_lshl_b32 s{S_T1}, s{S_NT}, 7")
    a(f"s_add_u32 s{S_T1}, s{S_T1}, s{S_T0}")
    a(f"v_add_u32 v{V_WOFF}, s{S_T1}, v{V_WOFF}")
    a(f"s_lshl_b32 s{S_WM0}, s{S_WV}, 10")
    a(f"s_add_u32 s{S_WM0}, s{S_WM0}, {WRING}")
    if ROTV == "k":
        a(f"s_mov_b32 s{S_ITW}, s{S_K}")
    elif ROTV == "0":
        a(f"s_mov_b32 s{S_ITW}, 0")
    elif ROTV == "b4":
        a(f"s_lshl_b32 s{S_ITW}, s{S_B}, 2")
    elif ROTV == "k1x4":
        a(f"s_and_b32 s{S_ITW}, s{S_K}, 1")
        a(f"s_lshl_b32 s{S_ITW}, s{S_ITW}, 2")
    elif ROTV == "k3x2":
        a(f"s_and_b32 s{S_ITW}, s{S_K}, 3")
        a(f"s_lshl_b32 s{S_ITW}, s{S_ITW}, 1")
    elif ROTV == "k3":
        a(f"s_and_b32 s{S_ITW}, s{S_K}, 3")
    elif ROTV == "k1":
        a(f"s_and_b32 s{S_ITW}, s{S_K}, 1")
    stage_regs(a)
    a(f"s_mul_i32 s{S_T0}, s{S_B}, 4096000")
    a(f"s_lshl_b32 s{S_T1}, s{S_MT}, 18")
    a(f"s_add_u32 s{S_T2}, s{S_T0}, s{S_T1}")
    a("s_waitcnt lgkmcnt(0)")
    a(f"s_add_u32 s{SRD_X}, s{S_X}, s{S_T2}")
    a(f"s_addc_u32 s{SRD_X+1}, s{S_X+1}, 0")
    a(f"s_and_b32 s{SRD_X+1}, s{SRD_X+1}, 0xffff")
    a(f"s_sub_u32 s{SRD_X+2}, 4096000, s{S_T1}")
    a(f"s_mov_b32 s{SRD_X+3}, 0x00020000")
    make_srd(a, SRD_W, S_W, W_BYTES)
    a(f"s_cmp_eq_u32 s{S_WAVE}, 8")
    a("s_cbranch_scc1 L_helper")

    q = VQ()
    for j in range(5):
        x_dma(a, 0, j)
        q.issue(('X', 0, j))
    for t in range(NPRE):
        w_dma(a, t)
        q.issue(('W', t))
    a(f"s_lshr_b32 s{S_KH}, s{S_WAVE}, 2")
    a(f"s_and_b32 s{S_NQ}, s{S_WAVE}, 3")
    a(f"s_lshl_b32 s{S_GRP}, s{S_B}, 3")
    a(f"s_add_u32 s{S_GRP}, s{S_GRP}, s{S_NT}")
    a(f"s_mov_b32 s{S_IT}, 0")
    a(f"v_and_b32 v{V_T0}, 15, v{V_LANE}")
    a(f"v_lshrrev_b32 v{V_T1}, 4, v{V_LANE}")
    make_srd(a, SRD_P, S_BI, 1024)
    a(f"s_lshl_b32 s{S_T0}, s{S_NT}, 7")
    a(f"s_lshl_b32 s{S_T1}, s{S_NQ}, 5")
    a(f"s_add_u32 s{S_T1}, s{S_T0}, s{S_T1}")
    a(f"v_lshl_add_u32 v{V_T2}, v{V_T0}, 1, s{S_T1}")
    a(f"buffer_load_ushort v{V_BIAS}, v{V_T2}, {sr(SRD_P,4)}, 0 offen")
    q.issue('bias')
    a(f"v_lshl_add_u32 v{V_T2}, v{V_LANE}, 1, s{S_T0}")
    make_srd(a, SRD_P, S_GA, 1024)
    a(f"buffer_load_ushort v{V_GB}, v{V_T2}, {sr(SRD_P,4)}, 0 offen")
    q.issue('gamma')
    make_srd(a, SRD_P, S_BE, 1024)
    a(f"v_mov_b32 v{V_B}, v{V_T2}")
    make_srd(a, SRD_WS, S_WS, WS_BYTES)
    make_srd(a, SRD_OUT, S_OUT, OUT_BYTES)
    make_srd(a, SRD_DBG, S_DBG, 256)
    a(f"v_mul_u32_u24 v{V_AADDR}, {2*XBLK}, v{V_T0}")
    a(f"s_lshl_b32 s{S_T0}, s{S_KH}, 2")
    a(f"v_add_u32 v{V_T2}, s{S_T0}, v{V_T1}")
    a(f"v_lshl_add_u32 v{V_AADDR}, v{V_T2}, 4, v{V_AADDR}")
    a(f"v_bfe_u32 v{V_T2}, v{V_LANE}, 2, 2")
    a(f"v_lshl_add_u32 v{V_BADDR}, v{V_T1}, 3, v{V_T2}")
    a(f"v_lshlrev_b32 v{V_BADDR}, 7, v{V_BADDR}")
    a(f"v_bfe_u32 v{V_T2}, v{V_LANE}, 3, 2")
    a(f"v_xor_b32 v{V_T2}, s{S_NQ}, v{V_T2}")
    a(f"v_lshl_add_u32 v{V_BADDR}, v{V_T2}, 5, v{V_BADDR}")
    a(f"v_and_b32 v{V_T2}, 3, v{V_LANE}")
    a(f"v_lshl_add_u32 v{V_BADDR}, v{V_T2}, 3, v{V_BADDR}")
    a(f"s_lshl_b32 s{S_T1}, s{S_KH}, 12")
    a(f"s_add_u32 s{S_T1}, s{S_T1}, {WRING}")
    a(f"v_add_u32 v{V_BADDR}, s{S_T1}, v{V_BADDR}")
    a(f"v_add_u32 v{V_BADDR2}, {5*8192}, v{V_BADDR}")
    a(f"s_movk_i32 s{S_NVAL}, 128")
    a(f"s_sub_u32 s{S_T1}, 37, s{S_KH}")
    a(f"s_cmp_eq_u32 s{S_MT}, 15")
    a(f"s_cselect_b32 s{S_NVAL}, 73, s{S_NVAL}")
    a(f"s_cselect_b32 s{S_CNT}, s{S_T1}, 64")
    a(f"v_lshl_add_u32 v{V_T2}, v{V_T1}, 5, s{S_T0}")
    for v in range(16):
        f1, r = v >> 2, v & 3
        a(f"s_sub_i32 s{S_T1}, s{S_NVAL}, {8*r+f1}")
        a(f"v_cmp_gt_i32 {sr(MASKS[v],2)}, s{S_T1}, v{V_T2}")
    a(f"s_lshl_b32 s{S_T0}, s{S_NQ}, 13")
    a(f"s_lshl_b32 s{S_T1}, s{S_KH}, 12")
    a(f"s_add_u32 s{S_T2}, s{S_T0}, s{S_T1}")
    a(f"s_add_u32 s{S_T2}, s{S_T2}, {L_EX}")
    a(f"s_xor_b32 s{S_T3}, s{S_T2}, 4096")
    a(f"v_lshl_add_u32 v{V_T0}, v{V_LANE}, 4, s{S_T3}")
    a(f"v_lshl_add_u32 v{V_T1}, v{V_LANE}, 4, s{S_T2}")
    a(f"buffer_load_ushort v{V_LANE}, v{V_B}, {sr(SRD_P,4)}, 0 offen")
    q.issue('beta')
    for i in range(32):
        a(f"v_mov_b32 v{V_ACC+i}, 0")
    n = q.need([('X', 0, j) for j in range(5)] + [('W', t) for t in range(NPRE)])
    a(f"s_waitcnt vmcnt({n})")
    a("s_barrier")
    b_read(a, 0, breg(0, 0))
    b_read(a, 1, breg(0, 1))
    for gi in range(GSW, 8):
        for (par, g) in A_SCHED[gi]:
            a_read(a, par, g, 0)

    def gsteps(G):
        s_, gi = G // 8, G % 8
        f0, cnt = GROUPS[gi]
        return [15 * s_ + f0 + k for k in range(cnt)]

    waits = {}
    for it in range(4):
        for gb in range(16):
            G = 16 * it + gb
            s_, gi = G // 8, G % 8
            need = [('W', t) for t in gsteps(G + 2) if t >= NPRE]
            if gi == GSW - 1:
                need += [('X', s_ + 1, j) for j in range(5)]
            n = q.need(need)
            if n is not None:
                waits[gb] = min(waits.get(gb, 99), n)
            xs = list(X_SCHED.get(gi, []))
            for t in gsteps(G):
                q.issue(('W', t + NSLOT))
                if xs:
                    q.issue(('X', s_ + 2, xs.pop(0)))

    if DSPLIT == 2:
        a(f"s_and_b32 s{S_T0}, s{S_WAVE}, 1")
        a(f"s_cmp_eq_u32 s{S_T0}, 1")
        a("s_cselect_b64 vcc, -1, 0")
    elif STAG or DSPLIT:
        a(f"s_cmp_ge_u32 s{S_WAVE}, 4")
        a("s_cselect_b64 vcc, -1, 0")
    if AB_NOREAD or AB_NOA:
        for g in range(15):
            a_read(a, 0, g, 0)
        for g in range(2, 14):
            a_read(a, 1, g, 0)
        b_read(a, 2, breg(1, 0))
        b_read(a, 3, breg(1, 1))
    if AB_ZDMA:
        a(f"s_mov_b32 s{SRD_X+2}, 0")
        a(f"s_mov_b32 s{SRD_W+2}, 0")
    if "--prio" in ARGS:
        a(f"s_cmp_ge_u32 s{S_WAVE}, 4")
        a("s_cbranch_scc0 L_noprio")
        a("s_setprio 1")
        a.label("L_noprio")
    if "--prio0" in ARGS:
        a(f"s_cmp_lt_u32 s{S_WAVE}, 4")
        a("s_cbranch_scc0 L_noprio")
        a("s_setprio 1")
        a.label("L_noprio")
    INLOOP[0] = True
    stamp(a, 2)
    def emit_loop(variant):
        a.label(f"L_loop{variant}")
        for gb in range(16):
            srel, gi = gb // 8, gb % 8
            f0, cnt = GROUPS[gi]
            u0 = 15 * srel + f0
            ncnt = GROUPS[(gi + 1) % 8][1]
            a.c(f"group {gb}: stage_rel={srel} steps {f0}..{f0+cnt-1}")
            buf = (srel + (1 if gi >= GSW else 0)) & 1
            early = []
            late = []
            for k in range(ncnt):
                early.append(lambda k=k: b_read(a, u0 + cnt + k, breg(gb + 1, k)))
            for r in A_SCHED[gi]:
                early.append(lambda r=r: a_read(a, r[0], r[1], buf))
            xs = list(X_SCHED.get(gi, []))
            for k in range(cnt):
                def wd(k=k):
                    if u0 + k == 30 - NSLOT:
                        a(f"s_cmp_eq_u32 s{S_IT}, 3")
                        a(f"s_cselect_b32 s{SRD_W+2}, 0, s{SRD_W+2}")
                    w_dma(a, u0 + k + NSLOT)
                late.append(wd)
                if xs:
                    def xd(j=xs.pop(0), first=(k == 0)):
                        if gb == GSW and first:
                            a(f"s_cmp_eq_u32 s{S_IT}, 3")
                            a(f"s_cselect_b32 s{SRD_X+2}, 0, s{SRD_X+2}")
                        x_dma(a, srel + 2, j)
                    late.append(xd)
            mf = [(f, k) for f in range(8) for k in range(cnt)]
            nm = len(mf)
            p1 = 1
            p2 = (P2 if cnt == 2 else P2 // 2) if STAG else 1
            ends = [i for i in range(nm - 1) if (i + 1) % cnt == 0]
            es = [i for i in ends if i <= max(p2, nm // 2 + 1)]
            ls = [i for i in ends if i >= p2]
            if not STAG:
                es = [i for i in ends]
                ls = [i for i in ends if i >= (1 if (DSPLIT or TWO) else 3)]
                if FRONT:
                    lim = FRONT if cnt == 2 else (FRONT + 1) // 2
                    es = [i for i in ends if i <= lim]
                    ls = [i for i in ends if 1 <= i <= lim]
            place = {}
            for idx, it_ in enumerate(early):
                place.setdefault(es[idx * len(es) // len(early)], []).append(it_)
            if TWO:
                half = len(ls) // 2
                lsel = ls[:half] if variant == 0 else ls[half:]
                for idx, it_ in enumerate(late):
                    place.setdefault(lsel[idx * len(lsel) // len(late)], []).append(it_)
            elif DSPLIT:
                half = len(ls) // 2
                la, lb = ls[:half], ls[half:]
                for idx, it_ in enumerate(late):
                    def ga(it_=it_, idx=idx):
                        a(f"s_cbranch_vccnz L_da_{gb}_{idx}")
                        it_()
                        a.label(f"L_da_{gb}_{idx}")
                    def gbb(it_=it_, idx=idx):
                        a(f"s_cbranch_vccz L_db_{gb}_{idx}")
                        it_()
                        a.label(f"L_db_{gb}_{idx}")
                    place.setdefault(la[idx * len(la) // len(late)], []).append(ga)
                    place.setdefault(lb[idx * len(lb) // len(late)], []).append(gbb)
            else:
                for idx, it_ in enumerate(late):
                    place.setdefault(ls[idx * len(ls) // len(late)], []).append(it_)
            if FINE:
                def flat(items):
                    out = []
                    for it_ in items:
                        n0 = len(a.lines)
                        it_()
                        out.append(a.lines[n0:])
                        del a.lines[n0:]
                    return out
                fe, fl = flat(early), flat(late)
                def split(groups):
                    out = []
                    for g_ in groups:
                        i_ = 0
                        while i_ < len(g_):
                            if "s_cmp_eq" in g_[i_]:
                                out.append(g_[i_:i_ + 2])
                                i_ += 2
                            else:
                                out.append([g_[i_]])
                                i_ += 1
                    return out
                fe, fl = split(fe), split(fl)
                seq = []
                ie = il = 0
                tot = len(fe) + len(fl)
                for z in range(tot):
                    take_e = ie < len(fe) and (il >= len(fl) or ie * len(fl) <= il * len(fe))
                    if take_e:
                        seq.append(fe[ie]); ie += 1
                    else:
                        seq.append(fl[il]); il += 1
                gaps = list(range(1, nm - 1 - FINE_TAIL))
                pl = {}
                for idx, ins in enumerate(seq):
                    pl.setdefault(gaps[idx * len(gaps) // len(seq)], []).extend(ins)
                a(f"s_waitcnt vmcnt({waits[gb]}) lgkmcnt(0)")
                for i, (f, k) in enumerate(mf):
                    mfma(a, f, f0 + k, breg(gb, k))
                    if i == p1:
                        a("s_barrier")
                    a.lines.extend(pl.get(i, []))
                continue
            a(f"s_waitcnt vmcnt({40 if AB_NOWAIT else waits[gb]}) lgkmcnt(0)")
            for i, (f, k) in enumerate(mf):
                mfma(a, f, f0 + k, breg(gb, k))
                if STAG:
                    if i == p1:
                        a(f"s_cbranch_vccnz L_b1_{gb}")
                        a("s_barrier")
                        a.label(f"L_b1_{gb}")
                    if i == p2:
                        a(f"s_cbranch_vccz L_b2_{gb}")
                        a("s_barrier")
                        a.label(f"L_b2_{gb}")
                elif i == p1 and not AB_NOBAR:
                    a("s_barrier")
                for it_ in place.get(i, []):
                    it_()
        a(f"s_add_u32 s{S_ITW}, s{S_ITW}, 2")
        stage_regs(a)
        if DIAGI:
            for i in range(3):
                a(f"s_cmp_eq_u32 s{S_IT}, {i}")
                a(f"s_cbranch_scc0 L_st{i}_{variant}")
                a(f"s_memtime s[{STAMPS[2+i]}:{STAMPS[2+i]+1}]")
                a.label(f"L_st{i}_{variant}")
        a(f"s_add_u32 s{S_IT}, s{S_IT}, 1")
        a(f"s_cmp_lt_u32 s{S_IT}, 4")
        a(f"s_cbranch_scc1 L_loop{variant}")


    if TWO:
        if TWO == 2:
            a(f"s_and_b32 s{S_T0}, s{S_WAVE}, 1")
            a(f"s_cmp_eq_u32 s{S_T0}, 1")
        else:
            a(f"s_cmp_ge_u32 s{S_WAVE}, 4")
        a("s_cbranch_scc1 L_loop1")
        emit_loop(0)
        a("s_branch L_epi")
        emit_loop(1)
        a.label("L_epi")
    else:
        emit_loop(0)

    INLOOP[0] = False
    a.c("epilogue")
    stamp(a, 3)
    stampe(a, 1)
    P = V_E
    Y = V_E + 16
    T = V_E + 32
    VS, VM2 = V_O, V_O + 1
    U0, U1, U2, U3 = V_O + 2, V_O + 3, V_O + 4, V_O + 5
    U4, U5 = V_O + 6, V_O + 7
    ST = V_O + 8
    UM = V_O + 40
    OA0, OA1 = V_O + 42, V_O + 43
    a("s_waitcnt lgkmcnt(0)")
    a(f"s_cmp_eq_u32 s{S_KH}, 0")
    a("s_cbranch_scc0 L_ex1")
    for f in range(4):
        a(f"ds_write_b128 v{V_T0}, {vr(V_ACC+16+4*f,4)} offset:{f*1024}")
    a("s_branch L_ex2")
    a.label("L_ex1")
    for f in range(4):
        a(f"ds_write_b128 v{V_T0}, {vr(V_ACC+4*f,4)} offset:{f*1024}")
    a("s_nop 1")
    for v in range(16):
        a(f"v_mov_b32 v{V_ACC+v}, v{V_ACC+16+v}")
    a.label("L_ex2")
    a(f"v_lshl_or_b32 v{V_GB}, v{V_LANE}, 16, v{V_GB}")
    a(f"v_mbcnt_lo_u32_b32 v{V_LANE}, -1, 0")
    a(f"v_mbcnt_hi_u32_b32 v{V_LANE}, -1, v{V_LANE}")
    a(f"v_lshlrev_b32 v{V_BIAS}, 16, v{V_BIAS}")
    a(f"v_and_b32 v{U0}, 15, v{V_LANE}")
    a(f"s_lshl_b32 s{S_T0}, s{S_NQ}, 6")
    a(f"s_add_u32 s{S_T0}, s{S_T0}, {L_YT}")
    a(f"v_lshl_add_u32 v{U1}, v{U0}, 2, s{S_T0}")
    a(f"v_lshl_add_u32 v{U1}, v{V_T2}, 8, v{U1}")
    a(f"s_lshl_b32 s{S_T0}, s{S_KH}, 9")
    a(f"s_lshl_b32 s{S_T1}, s{S_NQ}, 7")
    a(f"s_add_u32 s{S_T0}, s{S_T0}, s{S_T1}")
    a(f"v_lshl_add_u32 v{U2}, v{U0}, 3, s{S_T0}")
    a(f"v_cvt_f32_u32 v{U3}, s{S_CNT}")
    a(f"v_rcp_f32 v{U3}, v{U3}")
    for v in range(0, 16, 2):
        pk(a, "add", Y + v, V_ACC + v, V_BIAS, mods="op_sel_hi:[1,0]")
    a("s_waitcnt vmcnt(0) lgkmcnt(0)")
    a("s_barrier")
    for f in range(4):
        a(f"ds_read_b128 {vr(P+4*f,4)}, v{V_T1} offset:{f*1024}")
    for f in range(4):
        a(f"s_waitcnt lgkmcnt({3-f})")
        pk(a, "add", Y + 4 * f, Y + 4 * f, P + 4 * f)
        pk(a, "add", Y + 4 * f + 2, Y + 4 * f + 2, P + 4 * f + 2)
    for v in range(16):
        a(f"v_cndmask_b32 v{T+v}, 0, v{Y+v}, {sr(MASKS[v],2)}")
    for st in (8, 4, 2):
        for v in range(0, st, 2):
            pk(a, "add", T + v, T + v, T + v + st)
    a(f"v_add_f32 v{VS}, v{T}, v{T+1}")
    cross4_sum(a, VS, U4, U5)
    a(f"v_mul_f32 v{UM}, v{VS}, v{U3}")
    for v in range(0, 16, 2):
        pk(a, "add", T + v, Y + v, UM, mods="op_sel_hi:[1,0] neg_lo:[0,1] neg_hi:[0,1]")
    for v in range(16):
        a(f"v_cndmask_b32 v{T+v}, 0, v{T+v}, {sr(MASKS[v],2)}")
    for v in range(0, 8, 2):
        pk(a, "mul", T + v, T + v, T + v)
    for v in range(0, 8, 2):
        pk(a, "fma", T + v, T + 8 + v, T + 8 + v, T + v)
    for st in (4, 2):
        for v in range(0, st, 2):
            pk(a, "add", T + v, T + v, T + v + st)
    a(f"v_add_f32 v{VM2}, v{T}, v{T+1}")
    cross4_sum(a, VM2, U4, U5)
    a(f"ds_write_b64 v{U2}, {vr(VS,2)} offset:{L_ST}")
    for v in range(16):
        f1, r = v >> 2, v & 3
        a(f"ds_write_b32 v{U1}, v{Y+v} offset:{(8*r+f1)*256}")
    a(f"v_lshrrev_b32 v{U0}, 3, v{V_LANE}")
    a(f"v_and_b32 v{U1}, 7, v{V_LANE}")
    a(f"s_lshl_b32 s{S_T0}, s{S_WAVE}, 12")
    a(f"s_add_u32 s{S_T0}, s{S_T0}, {L_YT}")
    a(f"v_lshl_add_u32 v{U2}, v{U0}, 8, s{S_T0}")
    a(f"v_lshl_add_u32 v{U2}, v{U1}, 5, v{U2}")
    a("s_waitcnt lgkmcnt(0)")
    a("s_barrier")
    Z = V_E
    a(f"s_cmp_lg_u32 s{S_WAVE}, 0")
    a("s_cbranch_scc1 L_notw0")
    stampe(a, 2)
    a(f"v_lshlrev_b32 v{U3}, 3, v{V_LANE}")
    a(f"ds_read_b64 {vr(T,2)}, v{U3} offset:{L_ST}")
    a(f"ds_read_b64 {vr(T+2,2)}, v{U3} offset:{L_ST+512}")
    a(f"s_lshl_b32 s{S_T0}, s{S_GRP}, 2")
    a(f"v_mov_b32 v{U5}, s{S_T0}")
    a(f"buffer_load_dword v{T+12}, v{U5}, {sr(SRD_DBG,4)}, 0 offen offset:{CNT_OFF} sc1")
    a(f"s_cmp_eq_u32 s{S_MT}, 15")
    a(f"s_cselect_b32 s{S_T0}, 37, 64")
    a(f"s_cselect_b32 s{S_T1}, 36, 64")
    a(f"v_cvt_f32_u32 v{T+4}, s{S_T0}")
    a(f"v_cvt_f32_u32 v{T+5}, s{S_T1}")
    a(f"v_cvt_f32_u32 v{T+6}, s{S_NVAL}")
    a(f"v_rcp_f32 v{T+7}, v{T+4}")
    a(f"v_rcp_f32 v{T+8}, v{T+5}")
    a(f"v_rcp_f32 v{T+9}, v{T+6}")
    a(f"s_lshl_b32 s{S_T0}, s{S_GRP}, 13")
    a(f"s_lshl_b32 s{S_T1}, s{S_MT}, 9")
    a(f"s_add_u32 s{S_T1}, s{S_T1}, s{S_T0}")
    a(f"v_add_u32 v{U4}, s{S_T0}, v{U3}")
    a(f"v_add_u32 v{U3}, s{S_T1}, v{U3}")
    a("s_waitcnt lgkmcnt(0)")
    a(f"v_add_f32 v{VS}, v{T}, v{T+2}")
    a(f"v_mul_f32 v{T+9}, v{VS}, v{T+9}")
    a(f"v_add_f32 v{VM2}, v{T+1}, v{T+3}")
    a(f"v_fma_f32 v{T+10}, v{T}, v{T+7}, -v{T+9}")
    a(f"v_fma_f32 v{T+11}, v{T+2}, v{T+8}, -v{T+9}")
    a(f"v_mul_f32 v{T+10}, v{T+10}, v{T+10}")
    a(f"v_mul_f32 v{T+11}, v{T+11}, v{T+11}")
    a(f"v_fmac_f32 v{VM2}, v{T+10}, v{T+4}")
    a(f"v_fmac_f32 v{VM2}, v{T+11}, v{T+5}")
    a(f"v_max_f32 v{VM2}, 0, v{VM2}")
    a(f"v_and_b32 v{VM2}, 0x7fffffff, v{VM2}")
    a(f"buffer_store_dwordx2 {vr(VS,2)}, v{U3}, {sr(SRD_WS,4)}, 0 offen sc1")
    a(f"s_mov_b32 s{S_T2}, 0")
    a(f"s_movk_i32 s{S_T3}, 4096")
    a("s_waitcnt vmcnt(1)")
    a.label("L_pollA")
    a(f"v_readfirstlane_b32 s{S_T1}, v{T+12}")
    a(f"s_add_u32 s{S_T2}, s{S_T2}, 1")
    a(f"s_cmp_ge_u32 s{S_T1}, 16")
    a("s_cbranch_scc1 L_pollB")
    a(f"buffer_load_dword v{T+12}, v{U5}, {sr(SRD_DBG,4)}, 0 offen offset:{CNT_OFF} sc1")
    a("s_waitcnt vmcnt(0)")
    a(f"s_cmp_lt_u32 s{S_T2}, 0x400000")
    a("s_cbranch_scc1 L_pollA")
    a.label("L_pollB")
    for i in range(16):
        so = "0" if i < 8 else f"s{S_T3}"
        a(f"buffer_load_dwordx2 {vr(ST+2*i,2)}, v{U4}, {sr(SRD_WS,4)}, {so} offen offset:{(i%8)*512} sc1")
    a("s_waitcnt vmcnt(0)")
    a(f"v_or3_b32 v{T}, v{ST+1}, v{ST+3}, v{ST+5}")
    a(f"v_or3_b32 v{T+1}, v{ST+7}, v{ST+9}, v{ST+11}")
    a(f"v_or3_b32 v{T+2}, v{ST+13}, v{ST+15}, v{ST+17}")
    a(f"v_or3_b32 v{T+3}, v{ST+19}, v{ST+21}, v{ST+23}")
    a(f"v_or3_b32 v{T+4}, v{ST+25}, v{ST+27}, v{ST+29}")
    a(f"v_or3_b32 v{T}, v{T}, v{T+1}, v{ST+31}")
    a(f"v_or3_b32 v{T+2}, v{T+2}, v{T+3}, v{T+4}")
    a(f"v_or_b32 v{T}, v{T}, v{T+2}")
    a(f"v_cmp_gt_i32 vcc, 0, v{T}")
    a(f"s_add_u32 s{S_T2}, s{S_T2}, 1")
    a("s_nop 3")
    a("s_cbranch_vccz L_got")
    a(f"s_cmp_lt_u32 s{S_T2}, 0x400000")
    a("s_cbranch_scc1 L_pollB")
    a.label("L_got")
    stamp(a, 4)
    stampe(a, 3)
    for i in range(8):
        pk(a, "add", T + 2 * i, ST + 2 * i, ST + 2 * i + 16)
    for st in (4, 2, 1):
        for v in range(st):
            pk(a, "add", T + 2 * v, T + 2 * v, T + 2 * (v + st))
    a(f"v_mul_f32 v{T}, {f2u(1.0/1993.0):#x}, v{T}")
    a(f"s_mov_b32 s{S_T0}, {f2u(1.0/128.0):#x}")
    a(f"s_mov_b32 s{S_T1}, {f2u(1.0/73.0):#x}")
    for i in range(16):
        a(f"v_fma_f32 v{ST+2*i}, v{ST+2*i}, s{S_T0 if i < 15 else S_T1}, -v{T}")
    for i in range(4):
        a(f"v_mul_f32 v{T+2+i}, v{ST+2*i}, v{ST+2*i}")
    for i in range(4, 15):
        a(f"v_fmac_f32 v{T+2+(i&3)}, v{ST+2*i}, v{ST+2*i}")
    a(f"v_mul_f32 v{ST+30}, v{ST+30}, v{ST+30}")
    a(f"v_add_f32 v{T+2}, v{T+2}, v{T+3}")
    a(f"v_add_f32 v{T+4}, v{T+4}, v{T+5}")
    a(f"v_fmac_f32 v{T+1}, 0x42920000, v{ST+30}")
    a(f"v_add_f32 v{T+2}, v{T+2}, v{T+4}")
    a(f"v_fmac_f32 v{T+1}, 0x43000000, v{T+2}")
    a(f"v_mov_b32 v{T+2}, {f2u(1e-5):#x}")
    a(f"v_fmac_f32 v{T+2}, {f2u(1.0/1993.0):#x}, v{T+1}")
    a(f"v_rsq_f32 v{T+2}, v{T+2}")
    a(f"v_lshlrev_b32 v{T+3}, 16, v{V_GB}")
    a(f"v_and_b32 v{T+4}, 0xffff0000, v{V_GB}")
    a(f"v_lshlrev_b32 v{U3}, 2, v{V_LANE}")
    a(f"v_mul_f32 v{T+2}, v{T+2}, v{T+3}")
    a(f"v_fma_f32 v{T+3}, -v{T}, v{T+2}, v{T+4}")
    a(f"ds_write_b32 v{U3}, v{T+2} offset:{L_SC}")
    a(f"ds_write_b32 v{U3}, v{T+3} offset:{L_SH}")
    a.label("L_notw0")
    for i2 in range(2):
        for half in range(2):
            a(f"ds_read_b128 {vr(Z+8*i2+4*half,4)}, v{U2} offset:{i2*2048+half*16}")
    a(f"s_lshl_b32 s{S_T0}, s{S_WAVE}, 4")
    a(f"s_lshl_b32 s{S_T1}, s{S_MT}, 7")
    a(f"s_add_u32 s{S_T0}, s{S_T0}, s{S_T1}")
    a(f"v_add_u32 v{U0}, s{S_T0}, v{U0}")
    a(f"v_add_u32 v{U3}, 8, v{U0}")
    a(f"s_mul_i32 s{S_T0}, s{S_B}, 2040832")
    a(f"s_lshl_b32 s{S_T1}, s{S_NT}, 7")
    a(f"s_add_u32 s{S_T0}, s{S_T0}, s{S_T1}")
    a(f"v_lshl_add_u32 v{U4}, v{U1}, 4, s{S_T0}")
    a(f"v_lshl_add_u32 v{OA0}, v{U0}, 10, v{U4}")
    a(f"v_lshl_add_u32 v{OA1}, v{U3}, 10, v{U4}")
    a(f"v_mov_b32 v{U4}, 0x7f000000")
    a(f"s_movk_i32 s{S_T0}, 1993")
    a(f"v_cmp_gt_u32 vcc, s{S_T0}, v{U0}")
    a(f"v_cmp_gt_u32 {sr(MASKS[0],2)}, s{S_T0}, v{U3}")
    a(f"v_lshlrev_b32 v{U1}, 5, v{U1}")
    a(f"v_cndmask_b32 v{OA0}, v{U4}, v{OA0}, vcc")
    a(f"v_cndmask_b32 v{OA1}, v{U4}, v{OA1}, {sr(MASKS[0],2)}")
    k0 = math.sqrt(2.0 / math.pi)
    c0 = -2.0 * k0 * math.log2(math.e)
    c1 = c0 * 0.044715
    C0, C1, ONE = V_O + 8, V_O + 10, V_O + 12
    a(f"v_mov_b32 v{C0}, {f2u(c0):#x}")
    a(f"v_mov_b32 v{C1}, {f2u(c1):#x}")
    a(f"v_mov_b32 v{ONE}, 1.0")
    a("s_waitcnt lgkmcnt(0)")
    a("s_barrier")
    SC, SH, E = V_E + 16, V_E + 24, V_E + 32
    a(f"ds_read_b128 {vr(SC,4)}, v{U1} offset:{L_SC}")
    a(f"ds_read_b128 {vr(SH,4)}, v{U1} offset:{L_SH}")
    a(f"ds_read_b128 {vr(SC+4,4)}, v{U1} offset:{L_SC+16}")
    a(f"ds_read_b128 {vr(SH+4,4)}, v{U1} offset:{L_SH+16}")
    a("s_waitcnt lgkmcnt(0)")
    for v in range(0, 16, 2):
        pk(a, "fma", Z + v, Z + v, SC + (v & 7), SH + (v & 7))
    for v in range(0, 16, 2):
        pk(a, "mul", E + v, Z + v, Z + v)
    for v in range(0, 16, 2):
        pk(a, "fma", E + v, E + v, C1, C0, mods="op_sel_hi:[1,0,0]")
    for v in range(0, 16, 2):
        pk(a, "mul", E + v, E + v, Z + v)
    for v in range(16):
        a(f"v_exp_f32 v{E+v}, v{E+v}")
    for v in range(0, 16, 2):
        pk(a, "add", E + v, E + v, ONE, mods="op_sel_hi:[1,0]")
    for v in range(16):
        a(f"v_rcp_f32 v{E+v}, v{E+v}")
    for v in range(0, 16, 2):
        pk(a, "mul", Z + v, Z + v, E + v)
    for v in range(8):
        a(f"v_cvt_pk_bf16_f32 v{E+v}, v{Z+2*v}, v{Z+2*v+1}")
    a(f"buffer_store_dwordx4 {vr(E,4)}, v{OA0}, {sr(SRD_OUT,4)}, 0 offen {OFLAG}")
    a(f"buffer_store_dwordx4 {vr(E+4,4)}, v{OA1}, {sr(SRD_OUT,4)}, 0 offen {OFLAG}")
    if DIAG:
        a(f"s_cmp_lg_u32 s{S_WAVE}, 0")
        a("s_cbranch_scc1 L_end")
        a("s_waitcnt vmcnt(0)")
        stampe(a, 4)
        stamp(a, 5, True)
        a("s_waitcnt lgkmcnt(0)")
        if DIAGH:
            a(f"v_mov_b32 v{V_T0}, 0")
            a(f"v_cmp_eq_u32 vcc, 0, v{V_LANE}")
            a("s_nop 1")
            a("s_and_saveexec_b64 s[74:75], vcc")
            a(f"v_mov_b32 v{V_T1}, s{STAMPS[5]}")
            a(f"buffer_atomic_umax v{V_T1}, v{V_T0}, {sr(SRD_DBG,4)}, 0 offen sc1")
            a(f"s_not_b32 s{S_T0}, s{STAMPS[0]}")
            a(f"v_mov_b32 v{V_T1}, s{S_T0}")
            a(f"buffer_atomic_umax v{V_T1}, v{V_T0}, {sr(SRD_DBG,4)}, 0 offen offset:4 sc1")
            a(f"v_mov_b32 v{V_T1}, s{STAMPS[0]}")
            a(f"buffer_atomic_umax v{V_T1}, v{V_T0}, {sr(SRD_DBG,4)}, 0 offen offset:8 sc1")
            for i in range(3):
                a(f"s_sub_u32 s{S_T0}, s{STAMPS[i+2]}, s{STAMPS[i+1]}")
                a(f"v_mov_b32 v{V_T1}, s{S_T0}")
                a(f"buffer_atomic_umax v{V_T1}, v{V_T0}, {sr(SRD_DBG,4)}, 0 offen offset:{12+4*i} sc1")
                a(f"buffer_atomic_add v{V_T1}, v{V_T0}, {sr(SRD_DBG,4)}, 0 offen offset:{24+4*i} sc1")
            a("s_mov_b64 exec, s[74:75]")
        a(f"s_lshl_b32 s{S_T0}, s2, 6")
        a(f"s_add_u32 s{S_T0}, s{S_T0}, 0x1000000")
        a(f"v_mov_b32 v{V_T0}, s{S_T0}")
        for i in range(6):
            a(f"v_mov_b32 v{V_T1}, s{STAMPS[i]}")
            a(f"buffer_store_dword v{V_T1}, v{V_T0}, {sr(SRD_WS,4)}, 0 offen offset:{4*i}")
    a.label("L_end")
    a("s_endpgm")

    a.label("L_helper")
    INLOOP[0] = False
    hq = VQ()
    V_WOFF_ODD = 12
    a(f"v_xor_b32 v{V_WOFF_ODD}, 64, v{V_WOFF}")

    def h_w(t):
        slot, sig = t % NSLOT, t % 15
        for w in range(8):
            a(f"s_mov_b32 m0, {WRING + slot*8192 + w*1024}")
            a(f"s_add_u32 s{S_T0}, s{S_SW}, {tap_of(sig)*524288 + w*8192}")
            a(f"buffer_load_dwordx4 v{V_WOFF if w % 2 == 0 else V_WOFF_ODD}, {sr(SRD_W,4)}, s{S_T0} offen lds")
            hq.issue(('W', t, w))

    def h_x(d0, d1):
        for d in range(d0, d1):
            a(f"s_mov_b32 m0, {XBUF + d*XBLK}")
            a(f"s_add_u32 s{S_T0}, s{S_SX+1}, {d*8192}")
            a(f"buffer_load_dwordx4 v{V_XOFF}, {sr(SRD_X,4)}, s{S_T0} offen lds")
            hq.issue(('X', d))

    def h_bar(u):
        f0, cnt = GROUPS[u + 2]
        need = [('W', f0 + k, w) for k in range(cnt) for w in range(8)]
        if u == GSW - 1:
            need += [('X', d) for d in range(34)]
        n = hq.need(need)
        if n is not None:
            a(f"s_waitcnt vmcnt({n})")
            hq.waited = max(hq.waited, len(hq.q) - 1 - n)
        if u < 0 or not AB_NOBAR:
            a("s_barrier")

    todo = [('w', t) for t in range(NPRE, NSLOT)] + [('x', 0), ('x', 9), ('x', 18), ('x', 26)]
    for _ in range(2):
        k, v = todo.pop(0)
        h_w(v)
    make_srd(a, SRD_WS, S_WS, WS_BYTES)
    make_srd(a, SRD_DBG, S_DBG, 256)
    make_srd(a, SRD_P, S_X, X_BYTES)
    a(f"s_lshl_b32 s{S_GRP}, s{S_B}, 3")
    a(f"s_add_u32 s{S_GRP}, s{S_GRP}, s{S_NT}")
    a(f"s_lshl_b32 s{S_T0}, s{S_GRP}, 13")
    a(f"s_lshl_b32 s{S_T1}, s{S_MT}, 9")
    a(f"s_add_u32 s{S_T1}, s{S_T1}, s{S_T0}")
    a(f"v_lshl_add_u32 v{V_T0}, v{V_LANE}, 3, s{S_T1}")
    a("v_mov_b32 v14, 0")
    a("v_mov_b32 v15, -1.0")
    a(f"buffer_store_dwordx2 v[14:15], v{V_T0}, {sr(SRD_WS,4)}, 0 offen sc1")
    hq.issue('clr')
    a(f"v_mov_b32 v{V_T2}, 0x7f000000")
    a(f"v_lshlrev_b32 v{V_T1}, 10, v{V_LANE}")
    a(f"v_add_u32 v{V_T1}, 384, v{V_T1}")
    a(f"s_mul_i32 s{S_T2}, s2, {32*1024}")
    a(f"s_mul_i32 s{S_T3}, s2, {30*1024}")
    a(f"v_cmp_gt_u32 vcc, 32, v{V_LANE}")
    a(f"v_cmp_gt_u32 s[72:73], 30, v{V_LANE}")
    a(f"s_lshl_b32 s{S_T1}, s{S_GRP}, 2")
    a(f"v_mov_b32 v18, s{S_T1}")
    a(f"v_cndmask_b32 v16, v{V_T2}, v{V_T1}, vcc")
    a(f"v_cndmask_b32 v17, v{V_T2}, v{V_T1}, s[72:73]")
    a("v_mov_b32 v19, 1")
    a(f"buffer_load_dword v20, v17, {sr(SRD_W,4)}, s{S_T3} offen")
    hq.issue('t0')
    a(f"buffer_load_dword v21, v16, {sr(SRD_P,4)}, s{S_T2} offen")
    hq.issue('t1')
    if L2PF:
        a(f"s_mul_i32 s{S_T1}, s{S_MT}, 60")
        a(f"v_add_u32 v22, s{S_T1}, v{V_LANE}")
        a("v_lshrrev_b32 v23, 6, v22")
        a("v_and_b32 v22, 63, v22")
        a("v_lshlrev_b32 v23, 19, v23")
        a("v_lshl_add_u32 v22, v22, 10, v23")
        a(f"s_lshl_b32 s{S_T1}, s{S_NT}, 7")
        a(f"v_add_u32 v22, s{S_T1}, v22")
        a(f"v_cmp_gt_u32 vcc, 60, v{V_LANE}")
        a("s_nop 1")
        a(f"v_cndmask_b32 v22, v{V_T2}, v22, vcc")
        a(f"buffer_load_dword v24, v22, {sr(SRD_W,4)}, s{S_SW+1} offen {PFFLAG}")
        hq.issue('p1')
        a(f"buffer_load_dword v25, v22, {sr(SRD_W,4)}, s{S_SW+2} offen {PFFLAG}")
        hq.issue('p2')
    k, v = todo.pop(0)
    h_w(v)
    h_bar(-1)
    u = 0
    xend = {0: 9, 9: 18, 18: 26, 26: 34}
    while todo:
        for _ in range(2):
            if todo:
                k, v = todo.pop(0)
                if k == 'w':
                    h_w(v)
                else:
                    h_x(v, xend[v])
        h_bar(u)
        u += 1
    assert hq.waited > hq.q.index('clr')
    a(f"v_cmp_eq_u32 vcc, 0, v{V_LANE}")
    a("s_nop 1")
    a("s_and_saveexec_b64 s[74:75], vcc")
    a(f"buffer_atomic_add v19, v18, {sr(SRD_DBG,4)}, 0 offen offset:{CNT_OFF} sc1")
    hq.issue('atom')
    a("s_mov_b64 exec, s[74:75]")
    while u <= GSW:
        h_bar(u)
        u += 1
    if L2PF:
        while u < 8:
            a("s_barrier")
            u += 1
        a(f"s_mov_b32 s{S_T0}, 3")
        a.label("L_hloop")
        a(f"s_add_u32 s{S_T1}, s{S_T0}, s{S_K}")
        a(f"s_and_b32 s{S_T1}, s{S_T1}, 7")
        a(f"s_lshl_b32 s{S_T1}, s{S_T1}, 16")
        a(f"buffer_load_dword v24, v22, {sr(SRD_W,4)}, s{S_T1} offen {PFFLAG}")
        for _ in range(8):
            a("s_barrier")
        a(f"s_add_u32 s{S_T0}, s{S_T0}, 1")
        a(f"s_cmp_lt_u32 s{S_T0}, 8")
        a("s_cbranch_scc1 L_hloop")
    else:
        a(f"s_mov_b32 s{S_T0}, 0")
        a.label("L_hloop")
        if not AB_NOBAR:
            a("s_barrier")
        a(f"s_add_u32 s{S_T0}, s{S_T0}, 1")
        a(f"s_cmp_lt_u32 s{S_T0}, 16")
        a("s_cbranch_scc1 L_hloop")
    a("s_waitcnt vmcnt(0)")
    a("s_endpgm")


def kd(name, nvgpr):
    acc = (nvgpr + 3) // 4 * 4
    return f""".p2align 6
.amdhsa_kernel {name}
  .amdhsa_next_free_vgpr {nvgpr}
  .amdhsa_next_free_sgpr 102
  .amdhsa_accum_offset {acc}
  .amdhsa_group_segment_fixed_size 0
  .amdhsa_kernarg_size 64
  .amdhsa_user_sgpr_count 2
  .amdhsa_user_sgpr_kernarg_segment_ptr 1
  .amdhsa_system_sgpr_workgroup_id_x 1
  .amdhsa_float_denorm_mode_32 3
.end_amdhsa_kernel
"""


def main():
    args = [x for x in ARGS if not x.startswith("-")]
    out = args[0] if args else f"cdna_kernels/{NAME}.s"
    hdr = f"""; conv stem (HuBERT): conv1d(k=15,s=2) as implicit GEMM + per-channel norm over time + GELU, one fused kernel
; @launch grid=(256,1,1) block=(576,1,1) lds={LDS1}
.amdgcn_target "amdgcn-amd-amdhsa--gfx950"
.text
"""
    a = Asm()
    gen_kernel(a)
    txt = hdr + a.text() + '.section .rodata,"a"\n' + kd(NAME + "_kernel", NVGPR)
    open(out, "w").write(txt)


if __name__ == "__main__":
    main()
```

```python
import sys
import struct
import math

NAME = "standalone__self_sup_conv_stem_hubert__speech"
ARGS = sys.argv[1:]
DIAG = "--diag" in ARGS
DIAGE = "--diage" in ARGS
DIAGI = "--diagi" in ARGS
DIAGW = "--diagw" in ARGS
DIAGH = "--diagh" in ARGS
if DIAGH:
    DIAG = True
CNT_OFF = 64 if DIAGH else 0
OFLAG = "sc1"
for _a in ARGS:
    if _a.startswith("--oflag="):
        OFLAG = _a[8:].replace("+", " ")
STAG = "--stag" in ARGS
AB_NODMA = "--ab_nodma" in ARGS
AB_NOREAD = "--ab_noread" in ARGS
AB_NOBAR = "--ab_nobar" in ARGS
AB_ZDMA = "--ab_zdma" in ARGS
AB_NOA = "--ab_noa" in ARGS
XLIN = 0
WLIN = "--wlin" in ARGS
for _a in ARGS:
    if _a.startswith("--xlin="):
        XLIN = int(_a[7:])
ROTV = "k"
for _a in ARGS:
    if _a.startswith("--rotv="):
        ROTV = _a[7:]
L2PF = "--l2pf" in ARGS
PFFLAG = "sc1" if "--pfsc1" in ARGS else ""
FINE = "--fine" in ARGS
FINE_TAIL = 0
for _a in ARGS:
    if _a.startswith("--ftail="):
        FINE_TAIL = int(_a[8:])
FRONT = 0
for _a in ARGS:
    if _a.startswith("--front="):
        FRONT = int(_a[8:])
TWO = 2 if "--two2" in ARGS else (1 if "--two" in ARGS else 0)
DSPLIT = 2 if "--dsplit2" in ARGS else (1 if "--dsplit" in ARGS else 0)
AB_NOWAIT = "--ab_nowait" in ARGS
INLOOP = [False]
P2 = 9
for _a in ARGS:
    if _a.startswith("--p2="):
        P2 = int(_a[5:])
NPRE = 4
for _a in ARGS:
    if _a.startswith("--npre="):
        NPRE = int(_a[7:])

X_BYTES = 2 * 4000 * 512 * 2
W_BYTES = 15 * 512 * 512 * 2
OUT_BYTES = 2 * 1993 * 512 * 2
WS_BYTES = 268435456
XBLK = 1040
XBUF = 34 * XBLK
WRING = 2 * XBUF
NSLOT = 10
LDS1 = WRING + NSLOT * 8192
L_ST, L_SC, L_SH, L_EX, L_YT = 0, 1024, 1280, 2048, XBUF


def f2u(x):
    return struct.unpack("<I", struct.pack("<f", x))[0]


class Asm:
    def __init__(self):
        self.lines = []

    def __call__(self, s):
        if INLOOP[0] and "--ab_salu" in ARGS and s.startswith("buffer_load_dwordx4"):
            return
        if INLOOP[0] and "--ab_nosalu" in ARGS and (s.startswith("s_add_u32 m0") or s.startswith("s_add_u32 s57") or s.startswith("s_add_u32 s58") or s.startswith("s_mov_b32 s58")):
            return
        if INLOOP[0] and "--ab_dw" in ARGS and s.startswith("buffer_load_dwordx4"):
            s = s.replace("buffer_load_dwordx4", "buffer_load_dword")
        self.lines.append("    " + s)

    def label(self, l):
        self.lines.append(l + ":")

    def c(self, s):
        self.lines.append("    ; " + s)

    def text(self):
        return "\n".join(self.lines) + "\n"


def vr(a, n=1):
    return f"v{a}" if n == 1 else f"v[{a}:{a+n-1}]"


def sr(a, n=1):
    return f"s{a}" if n == 1 else f"s[{a}:{a+n-1}]"


V_GB = 0
V_LANE, V_T0, V_T1, V_T2 = 1, 2, 3, 4
V_BADDR2, V_AADDR, V_BADDR, V_WOFF, V_XOFF, V_BIAS, V_XOFF5 = 5, 6, 7, 8, 9, 10, 11
V_E = 12
V_O = 72
V_B = 120
V_ACC = 136
NVGPR = 168

S_X, S_W, S_BI, S_GA = 4, 6, 8, 10
S_BE, S_OUT, S_DBG, S_WS = 12, 14, 16, 18
SRD_X, SRD_W, SRD_WS, SRD_P = 20, 24, 28, 32
SRD_OUT, SRD_DBG = 36, 40
S_K, S_Q, S_B, S_NT, S_MT = 44, 45, 46, 47, 48
S_WAVE, S_KH, S_NQ, S_WM0, S_XM0, S_XM05 = 49, 50, 51, 52, 53, 54
S_ITW, S_IT, S_T0, S_T1, S_T2, S_T3 = 55, 56, 57, 58, 59, 60
S_SW = 61
S_SX = 65
S_NVAL, S_CNT, S_GRP = 69, 70, 71
MASKS = list(range(4, 20, 2)) + list(range(72, 88, 2))
S_WV = 88
STAMPS = [90, 92, 94, 96, 98, 100]


def stampe(a, i):
    if DIAGE:
        a(f"s_memtime s[{STAMPS[i]}:{STAMPS[i]+1}]")


def stamp(a, i, rt=False):
    if DIAGI and not rt:
        if i == 2:
            a(f"s_memtime s[{STAMPS[1]}:{STAMPS[1]+1}]")
        return
    if DIAGW and not rt:
        if i == 2:
            a(f"s_memtime s[{STAMPS[1]}:{STAMPS[1]+1}]")
            a(f"s_memrealtime s[{STAMPS[2]}:{STAMPS[2]+1}]")
        if i == 3:
            a(f"s_memtime s[{STAMPS[3]}:{STAMPS[3]+1}]")
            a(f"s_memrealtime s[{STAMPS[4]}:{STAMPS[4]+1}]")
        return
    if DIAG and (rt or not DIAGE):
        a(f"s_mem{'real' if rt else ''}time s[{STAMPS[i]}:{STAMPS[i]+1}]")


def frag(par, g):
    if par == 0 or g < 2:
        return V_E + 4 * g
    return V_O + 4 * (g - 2)


def tap_of(sig):
    return 2 * sig if sig < 8 else 2 * (sig - 8) + 1


def make_srd(a, srd, base, nbytes):
    a(f"s_mov_b32 s{srd}, s{base}")
    a(f"s_and_b32 s{srd+1}, s{base+1}, 0xffff")
    a(f"s_mov_b32 s{srd+2}, {nbytes}")
    a(f"s_mov_b32 s{srd+3}, 0x00020000")


class VQ:
    def __init__(self):
        self.q = []
        self.waited = -1

    def issue(self, tag):
        self.q.append(tag)

    def need(self, tags):
        idx = [self.q.index(t) for t in tags if t in self.q]
        if not idx:
            return None
        return len(self.q) - 1 - max(idx)


GROUPS = [(0, 2), (2, 2), (4, 2), (6, 2), (8, 2), (10, 2), (12, 2), (14, 1)]
GSW = 5
A_SCHED = {0: [(0, 9), (0, 10), (0, 11), (0, 12)],
           1: [(0, 13), (0, 14), (1, 2), (1, 3)],
           2: [(1, 0), (1, 1), (1, 4), (1, 5)],
           3: [(1, 6), (1, 7), (1, 8), (1, 9)],
           4: [(1, 10), (1, 11), (1, 12), (1, 13)],
           5: [(0, 0), (0, 1), (0, 2), (0, 3)],
           6: [(0, 4), (0, 5), (0, 6), (0, 7)],
           7: [(0, 8)]}
X_SCHED = {5: [0, 1], 6: [2, 3], 7: [4]}


def breg(gi, k):
    return V_B + 8 * (gi & 1) + 4 * k


def stage_regs(a):
    for rel in range(4):
        a(f"s_add_u32 s{S_T0}, s{S_ITW}, {rel}")
        a(f"s_and_b32 s{S_T0}, s{S_T0}, 7")
        a(f"s_lshl_b32 s{S_SW+rel}, s{S_T0}, 16")
        a(f"s_lshl_b32 s{S_SX+rel}, s{S_T0}, 7")


def a_read(a, par, g, buf):
    if INLOOP[0] and (AB_NOREAD or AB_NOA):
        return
    e = 2 * g + par
    off = buf * XBUF + (e >> 3) * XBLK + (e & 7) * 128
    a(f"ds_read_b128 {vr(frag(par, g), 4)}, v{V_AADDR} offset:{off}")


def b_read(a, t, b):
    if INLOOP[0] and AB_NOREAD:
        return
    slot = t % NSLOT
    va, sl = (V_BADDR, slot) if slot < 5 else (V_BADDR2, slot - 5)
    a(f"ds_read_b64_tr_b16 {vr(b, 2)}, v{va} offset:{sl*8192}")
    a(f"ds_read_b64_tr_b16 {vr(b+2, 2)}, v{va} offset:{sl*8192+512}")


def w_dma(a, trel):
    if INLOOP[0] and AB_NODMA:
        return
    slot = trel % NSLOT
    srel, sig = trel // 15, trel % 15
    a(f"s_add_u32 m0, s{S_WM0}, {slot*8192}")
    a(f"s_add_u32 s{S_T0}, s{S_SW+srel}, {tap_of(sig) * 524288}")
    a(f"buffer_load_dwordx4 v{V_WOFF}, {sr(SRD_W,4)}, s{S_T0} offen lds")


def x_dma(a, srel, j):
    if INLOOP[0] and AB_NODMA:
        return
    buf = srel & 1
    if j < 4:
        a(f"s_add_u32 m0, s{S_XM0}, {buf*XBUF + j*8*XBLK}")
        a(f"s_add_u32 s{S_T1}, s{S_SX+srel}, {j*65536}")
        a(f"buffer_load_dwordx4 v{V_XOFF}, {sr(SRD_X,4)}, s{S_T1} offen lds")
    else:
        a(f"s_add_u32 m0, s{S_XM05}, {buf*XBUF}")
        a(f"s_mov_b32 s{S_T1}, s{S_SX+srel}")
        a(f"buffer_load_dwordx4 v{V_XOFF5}, {sr(SRD_X,4)}, s{S_T1} offen lds")


def mfma(a, f, sig, b):
    acc = V_ACC + 4 * f
    par, j = (0, sig) if sig < 8 else (1, sig - 8)
    g = j + f
    a(f"v_mfma_f32_16x16x32_bf16 {vr(acc,4)}, {vr(frag(par,g),4)}, {vr(b,4)}, {vr(acc,4)}")


def cross4_sum(a, v, t0, t1):
    a(f"v_mov_b32 v{t0}, v{v}")
    a(f"v_mov_b32 v{t1}, v{v}")
    a("s_nop 1")
    a(f"v_permlane32_swap_b32 v{t0}, v{t1}")
    a("s_nop 1")
    a(f"v_add_f32 v{v}, v{t0}, v{t1}")
    a(f"v_mov_b32 v{t0}, v{v}")
    a(f"v_mov_b32 v{t1}, v{v}")
    a("s_nop 1")
    a(f"v_permlane16_swap_b32 v{t0}, v{t1}")
    a("s_nop 1")
    a(f"v_add_f32 v{v}, v{t0}, v{t1}")


def pk(a, op, d, s0, s1, s2=None, mods=""):
    ops = f"{vr(d,2)}, {vr(s0,2)}, {vr(s1,2)}" + (f", {vr(s2,2)}" if s2 is not None else "")
    a(f"v_pk_{op}_f32 {ops} {mods}".rstrip())


def gen_kernel(a):
    kname = NAME + "_kernel"
    a.lines.append(f".globl {kname}")
    a.lines.append(".p2align 8")
    a.lines.append(f".type {kname},@function")
    a.label(kname)
    a("s_cmp_ge_u32 s2, 256")
    a("s_cbranch_scc1 L_end")
    stamp(a, 0, True)
    stamp(a, 1)
    a(f"s_load_dwordx16 {sr(S_X,16)}, s[0:1], 0")
    a(f"v_lshrrev_b32 v{V_T0}, 6, v0")
    a(f"v_and_b32 v{V_LANE}, 63, v0")
    a(f"v_readfirstlane_b32 s{S_WAVE}, v{V_T0}")
    a(f"s_and_b32 s{S_K}, s2, 7")
    a(f"s_lshr_b32 s{S_Q}, s2, 3")
    a(f"s_lshr_b32 s{S_B}, s{S_K}, 2")
    a(f"s_and_b32 s{S_NT}, s{S_K}, 3")
    a(f"s_lshl_b32 s{S_NT}, s{S_NT}, 1")
    a(f"s_lshr_b32 s{S_T0}, s{S_Q}, 4")
    a(f"s_add_u32 s{S_NT}, s{S_NT}, s{S_T0}")
    a(f"s_and_b32 s{S_MT}, s{S_Q}, 15")
    a(f"s_and_b32 s{S_WV}, s{S_WAVE}, 7")
    a(f"v_lshrrev_b32 v{V_T0}, 3, v{V_LANE}")
    a(f"v_and_b32 v{V_T1}, 7, v{V_LANE}")
    a(f"v_lshlrev_b32 v{V_T2}, 10, v{V_T0}")
    a(f"v_lshl_add_u32 v{V_T2}, v{V_T1}, 4, v{V_T2}")
    a(f"s_lshl_b32 s{S_T0}, s{S_WV}, 13")
    a(f"v_add_u32 v{V_XOFF}, s{S_T0}, v{V_T2}")
    a(f"s_and_b32 s{S_T1}, s{S_WV}, 1")
    a(f"s_add_u32 s{S_T2}, s{S_T1}, 32")
    a(f"s_lshl_b32 s{S_T3}, s{S_T2}, 13")
    a(f"v_add_u32 v{V_XOFF5}, s{S_T3}, v{V_T2}")
    a(f"s_mul_i32 s{S_XM05}, s{S_T2}, {XBLK}")
    a(f"s_mul_i32 s{S_XM0}, s{S_WV}, {XBLK}")
    a(f"v_bfe_u32 v{V_T2}, v{V_LANE}, 4, 1")
    a(f"s_lshl_b32 s{S_T1}, s{S_T1}, 1")
    a(f"v_or_b32 v{V_T2}, s{S_T1}, v{V_T2}")
    a(f"v_lshlrev_b32 v{V_T2}, 1, v{V_T2}")
    a(f"v_xor_b32 v{V_T2}, v{V_T2}, v{V_T1}")
    a(f"v_lshlrev_b32 v{V_WOFF}, 10, v{V_T0}")
    a(f"v_lshl_add_u32 v{V_WOFF}, v{V_T2}, 4, v{V_WOFF}")
    a(f"s_lshl_b32 s{S_T1}, s{S_NT}, 7")
    a(f"s_add_u32 s{S_T1}, s{S_T1}, s{S_T0}")
    a(f"v_add_u32 v{V_WOFF}, s{S_T1}, v{V_WOFF}")
    a(f"s_lshl_b32 s{S_WM0}, s{S_WV}, 10")
    a(f"s_add_u32 s{S_WM0}, s{S_WM0}, {WRING}")
    if ROTV == "k":
        a(f"s_mov_b32 s{S_ITW}, s{S_K}")
    elif ROTV == "0":
        a(f"s_mov_b32 s{S_ITW}, 0")
    elif ROTV == "b4":
        a(f"s_lshl_b32 s{S_ITW}, s{S_B}, 2")
    elif ROTV == "k1x4":
        a(f"s_and_b32 s{S_ITW}, s{S_K}, 1")
        a(f"s_lshl_b32 s{S_ITW}, s{S_ITW}, 2")
    elif ROTV == "k3x2":
        a(f"s_and_b32 s{S_ITW}, s{S_K}, 3")
        a(f"s_lshl_b32 s{S_ITW}, s{S_ITW}, 1")
    elif ROTV == "k3":
        a(f"s_and_b32 s{S_ITW}, s{S_K}, 3")
    elif ROTV == "k1":
        a(f"s_and_b32 s{S_ITW}, s{S_K}, 1")
    stage_regs(a)
    a(f"s_mul_i32 s{S_T0}, s{S_B}, 4096000")
    a(f"s_lshl_b32 s{S_T1}, s{S_MT}, 18")
    a(f"s_add_u32 s{S_T2}, s{S_T0}, s{S_T1}")
    a("s_waitcnt lgkmcnt(0)")
    a(f"s_add_u32 s{SRD_X}, s{S_X}, s{S_T2}")
    a(f"s_addc_u32 s{SRD_X+1}, s{S_X+1}, 0")
    a(f"s_and_b32 s{SRD_X+1}, s{SRD_X+1}, 0xffff")
    a(f"s_sub_u32 s{SRD_X+2}, 4096000, s{S_T1}")
    a(f"s_mov_b32 s{SRD_X+3}, 0x00020000")
    make_srd(a, SRD_W, S_W, W_BYTES)
    a(f"s_cmp_eq_u32 s{S_WAVE}, 8")
    a("s_cbranch_scc1 L_helper")

    q = VQ()
    for j in range(5):
        x_dma(a, 0, j)
        q.issue(('X', 0, j))
    for t in range(NPRE):
        w_dma(a, t)
        q.issue(('W', t))
    a(f"s_lshr_b32 s{S_KH}, s{S_WAVE}, 2")
    a(f"s_and_b32 s{S_NQ}, s{S_WAVE}, 3")
    a(f"s_lshl_b32 s{S_GRP}, s{S_B}, 3")
    a(f"s_add_u32 s{S_GRP}, s{S_GRP}, s{S_NT}")
    a(f"s_mov_b32 s{S_IT}, 0")
    a(f"v_and_b32 v{V_T0}, 15, v{V_LANE}")
    a(f"v_lshrrev_b32 v{V_T1}, 4, v{V_LANE}")
    make_srd(a, SRD_P, S_BI, 1024)
    a(f"s_lshl_b32 s{S_T0}, s{S_NT}, 7")
    a(f"s_lshl_b32 s{S_T1}, s{S_NQ}, 5")
    a(f"s_add_u32 s{S_T1}, s{S_T0}, s{S_T1}")
    a(f"v_lshl_add_u32 v{V_T2}, v{V_T0}, 1, s{S_T1}")
    a(f"buffer_load_ushort v{V_BIAS}, v{V_T2}, {sr(SRD_P,4)}, 0 offen")
    q.issue('bias')
    a(f"v_lshl_add_u32 v{V_T2}, v{V_LANE}, 1, s{S_T0}")
    make_srd(a, SRD_P, S_GA, 1024)
    a(f"buffer_load_ushort v{V_GB}, v{V_T2}, {sr(SRD_P,4)}, 0 offen")
    q.issue('gamma')
    make_srd(a, SRD_P, S_BE, 1024)
    a(f"v_mov_b32 v{V_B}, v{V_T2}")
    make_srd(a, SRD_WS, S_WS, WS_BYTES)
    make_srd(a, SRD_OUT, S_OUT, OUT_BYTES)
    make_srd(a, SRD_DBG, S_DBG, 256)
    a(f"v_mul_u32_u24 v{V_AADDR}, {2*XBLK}, v{V_T0}")
    a(f"s_lshl_b32 s{S_T0}, s{S_KH}, 2")
    a(f"v_add_u32 v{V_T2}, s{S_T0}, v{V_T1}")
    a(f"v_lshl_add_u32 v{V_AADDR}, v{V_T2}, 4, v{V_AADDR}")
    a(f"v_bfe_u32 v{V_T2}, v{V_LANE}, 2, 2")
    a(f"v_lshl_add_u32 v{V_BADDR}, v{V_T1}, 3, v{V_T2}")
    a(f"v_lshlrev_b32 v{V_BADDR}, 7, v{V_BADDR}")
    a(f"v_bfe_u32 v{V_T2}, v{V_LANE}, 3, 2")
    a(f"v_xor_b32 v{V_T2}, s{S_NQ}, v{V_T2}")
    a(f"v_lshl_add_u32 v{V_BADDR}, v{V_T2}, 5, v{V_BADDR}")
    a(f"v_and_b32 v{V_T2}, 3, v{V_LANE}")
    a(f"v_lshl_add_u32 v{V_BADDR}, v{V_T2}, 3, v{V_BADDR}")
    a(f"s_lshl_b32 s{S_T1}, s{S_KH}, 12")
    a(f"s_add_u32 s{S_T1}, s{S_T1}, {WRING}")
    a(f"v_add_u32 v{V_BADDR}, s{S_T1}, v{V_BADDR}")
    a(f"v_add_u32 v{V_BADDR2}, {5*8192}, v{V_BADDR}")
    a(f"s_movk_i32 s{S_NVAL}, 128")
    a(f"s_sub_u32 s{S_T1}, 37, s{S_KH}")
    a(f"s_cmp_eq_u32 s{S_MT}, 15")
    a(f"s_cselect_b32 s{S_NVAL}, 73, s{S_NVAL}")
    a(f"s_cselect_b32 s{S_CNT}, s{S_T1}, 64")
    a(f"v_lshl_add_u32 v{V_T2}, v{V_T1}, 5, s{S_T0}")
    for v in range(16):
        f1, r = v >> 2, v & 3
        a(f"s_sub_i32 s{S_T1}, s{S_NVAL}, {8*r+f1}")
        a(f"v_cmp_gt_i32 {sr(MASKS[v],2)}, s{S_T1}, v{V_T2}")
    a(f"s_lshl_b32 s{S_T0}, s{S_NQ}, 13")
    a(f"s_lshl_b32 s{S_T1}, s{S_KH}, 12")
    a(f"s_add_u32 s{S_T2}, s{S_T0}, s{S_T1}")
    a(f"s_add_u32 s{S_T2}, s{S_T2}, {L_EX}")
    a(f"s_xor_b32 s{S_T3}, s{S_T2}, 4096")
    a(f"v_lshl_add_u32 v{V_T0}, v{V_LANE}, 4, s{S_T3}")
    a(f"v_lshl_add_u32 v{V_T1}, v{V_LANE}, 4, s{S_T2}")
    a(f"buffer_load_ushort v{V_LANE}, v{V_B}, {sr(SRD_P,4)}, 0 offen")
    q.issue('beta')
    for i in range(32):
        a(f"v_mov_b32 v{V_ACC+i}, 0")
    n = q.need([('X', 0, j) for j in range(5)] + [('W', t) for t in range(NPRE)])
    a(f"s_waitcnt vmcnt({n})")
    a("s_barrier")
    b_read(a, 0, breg(0, 0))
    b_read(a, 1, breg(0, 1))
    for gi in range(GSW, 8):
        for (par, g) in A_SCHED[gi]:
            a_read(a, par, g, 0)

    def gsteps(G):
        s_, gi = G // 8, G % 8
        f0, cnt = GROUPS[gi]
        return [15 * s_ + f0 + k for k in range(cnt)]

    waits = {}
    for it in range(4):
        for gb in range(16):
            G = 16 * it + gb
            s_, gi = G // 8, G % 8
            need = [('W', t) for t in gsteps(G + 2) if t >= NPRE]
            if gi == GSW - 1:
                need += [('X', s_ + 1, j) for j in range(5)]
            n = q.need(need)
            if n is not None:
                waits[gb] = min(waits.get(gb, 99), n)
            xs = list(X_SCHED.get(gi, []))
            for t in gsteps(G):
                q.issue(('W', t + NSLOT))
                if xs:
                    q.issue(('X', s_ + 2, xs.pop(0)))

    if DSPLIT == 2:
        a(f"s_and_b32 s{S_T0}, s{S_WAVE}, 1")
        a(f"s_cmp_eq_u32 s{S_T0}, 1")
        a("s_cselect_b64 vcc, -1, 0")
    elif STAG or DSPLIT:
        a(f"s_cmp_ge_u32 s{S_WAVE}, 4")
        a("s_cselect_b64 vcc, -1, 0")
    if AB_NOREAD or AB_NOA:
        for g in range(15):
            a_read(a, 0, g, 0)
        for g in range(2, 14):
            a_read(a, 1, g, 0)
        b_read(a, 2, breg(1, 0))
        b_read(a, 3, breg(1, 1))
    if AB_ZDMA:
        a(f"s_mov_b32 s{SRD_X+2}, 0")
        a(f"s_mov_b32 s{SRD_W+2}, 0")
    if "--prio" in ARGS:
        a(f"s_cmp_ge_u32 s{S_WAVE}, 4")
        a("s_cbranch_scc0 L_noprio")
        a("s_setprio 1")
        a.label("L_noprio")
    if "--prio0" in ARGS:
        a(f"s_cmp_lt_u32 s{S_WAVE}, 4")
        a("s_cbranch_scc0 L_noprio")
        a("s_setprio 1")
        a.label("L_noprio")
    INLOOP[0] = True
    stamp(a, 2)
    def emit_loop(variant):
        a.label(f"L_loop{variant}")
        for gb in range(16):
            srel, gi = gb // 8, gb % 8
            f0, cnt = GROUPS[gi]
            u0 = 15 * srel + f0
            ncnt = GROUPS[(gi + 1) % 8][1]
            a.c(f"group {gb}: stage_rel={srel} steps {f0}..{f0+cnt-1}")
            buf = (srel + (1 if gi >= GSW else 0)) & 1
            early = []
            late = []
            for k in range(ncnt):
                early.append(lambda k=k: b_read(a, u0 + cnt + k, breg(gb + 1, k)))
            for r in A_SCHED[gi]:
                early.append(lambda r=r: a_read(a, r[0], r[1], buf))
            xs = list(X_SCHED.get(gi, []))
            for k in range(cnt):
                def wd(k=k):
                    if u0 + k == 30 - NSLOT:
                        a(f"s_cmp_eq_u32 s{S_IT}, 3")
                        a(f"s_cselect_b32 s{SRD_W+2}, 0, s{SRD_W+2}")
                    w_dma(a, u0 + k + NSLOT)
                late.append(wd)
                if xs:
                    def xd(j=xs.pop(0), first=(k == 0)):
                        if gb == GSW and first:
                            a(f"s_cmp_eq_u32 s{S_IT}, 3")
                            a(f"s_cselect_b32 s{SRD_X+2}, 0, s{SRD_X+2}")
                        x_dma(a, srel + 2, j)
                    late.append(xd)
            mf = [(f, k) for f in range(8) for k in range(cnt)]
            nm = len(mf)
            p1 = 1
            p2 = (P2 if cnt == 2 else P2 // 2) if STAG else 1
            ends = [i for i in range(nm - 1) if (i + 1) % cnt == 0]
            es = [i for i in ends if i <= max(p2, nm // 2 + 1)]
            ls = [i for i in ends if i >= p2]
            if not STAG:
                es = [i for i in ends]
                ls = [i for i in ends if i >= (1 if (DSPLIT or TWO) else 3)]
                if FRONT:
                    lim = FRONT if cnt == 2 else (FRONT + 1) // 2
                    es = [i for i in ends if i <= lim]
                    ls = [i for i in ends if 1 <= i <= lim]
            place = {}
            for idx, it_ in enumerate(early):
                place.setdefault(es[idx * len(es) // len(early)], []).append(it_)
            if TWO:
                half = len(ls) // 2
                lsel = ls[:half] if variant == 0 else ls[half:]
                for idx, it_ in enumerate(late):
                    place.setdefault(lsel[idx * len(lsel) // len(late)], []).append(it_)
            elif DSPLIT:
                half = len(ls) // 2
                la, lb = ls[:half], ls[half:]
                for idx, it_ in enumerate(late):
                    def ga(it_=it_, idx=idx):
                        a(f"s_cbranch_vccnz L_da_{gb}_{idx}")
                        it_()
                        a.label(f"L_da_{gb}_{idx}")
                    def gbb(it_=it_, idx=idx):
                        a(f"s_cbranch_vccz L_db_{gb}_{idx}")
                        it_()
                        a.label(f"L_db_{gb}_{idx}")
                    place.setdefault(la[idx * len(la) // len(late)], []).append(ga)
                    place.setdefault(lb[idx * len(lb) // len(late)], []).append(gbb)
            else:
                for idx, it_ in enumerate(late):
                    place.setdefault(ls[idx * len(ls) // len(late)], []).append(it_)
            if FINE:
                def flat(items):
                    out = []
                    for it_ in items:
                        n0 = len(a.lines)
                        it_()
                        out.append(a.lines[n0:])
                        del a.lines[n0:]
                    return out
                fe, fl = flat(early), flat(late)
                def split(groups):
                    out = []
                    for g_ in groups:
                        i_ = 0
                        while i_ < len(g_):
                            if "s_cmp_eq" in g_[i_]:
                                out.append(g_[i_:i_ + 2])
                                i_ += 2
                            else:
                                out.append([g_[i_]])
                                i_ += 1
                    return out
                fe, fl = split(fe), split(fl)
                seq = []
                ie = il = 0
                tot = len(fe) + len(fl)
                for z in range(tot):
                    take_e = ie < len(fe) and (il >= len(fl) or ie * len(fl) <= il * len(fe))
                    if take_e:
                        seq.append(fe[ie]); ie += 1
                    else:
                        seq.append(fl[il]); il += 1
                gaps = list(range(1, nm - 1 - FINE_TAIL))
                pl = {}
                for idx, ins in enumerate(seq):
                    pl.setdefault(gaps[idx * len(gaps) // len(seq)], []).extend(ins)
                a(f"s_waitcnt vmcnt({waits[gb]}) lgkmcnt(0)")
                for i, (f, k) in enumerate(mf):
                    mfma(a, f, f0 + k, breg(gb, k))
                    if i == p1:
                        a("s_barrier")
                    a.lines.extend(pl.get(i, []))
                continue
            a(f"s_waitcnt vmcnt({40 if AB_NOWAIT else waits[gb]}) lgkmcnt(0)")
            for i, (f, k) in enumerate(mf):
                mfma(a, f, f0 + k, breg(gb, k))
                if STAG:
                    if i == p1:
                        a(f"s_cbranch_vccnz L_b1_{gb}")
                        a("s_barrier")
                        a.label(f"L_b1_{gb}")
                    if i == p2:
                        a(f"s_cbranch_vccz L_b2_{gb}")
                        a("s_barrier")
                        a.label(f"L_b2_{gb}")
                elif i == p1 and not AB_NOBAR:
                    a("s_barrier")
                for it_ in place.get(i, []):
                    it_()
        a(f"s_add_u32 s{S_ITW}, s{S_ITW}, 2")
        stage_regs(a)
        if DIAGI:
            for i in range(3):
                a(f"s_cmp_eq_u32 s{S_IT}, {i}")
                a(f"s_cbranch_scc0 L_st{i}_{variant}")
                a(f"s_memtime s[{STAMPS[2+i]}:{STAMPS[2+i]+1}]")
                a.label(f"L_st{i}_{variant}")
        a(f"s_add_u32 s{S_IT}, s{S_IT}, 1")
        a(f"s_cmp_lt_u32 s{S_IT}, 4")
        a(f"s_cbranch_scc1 L_loop{variant}")


    if TWO:
        if TWO == 2:
            a(f"s_and_b32 s{S_T0}, s{S_WAVE}, 1")
            a(f"s_cmp_eq_u32 s{S_T0}, 1")
        else:
            a(f"s_cmp_ge_u32 s{S_WAVE}, 4")
        a("s_cbranch_scc1 L_loop1")
        emit_loop(0)
        a("s_branch L_epi")
        emit_loop(1)
        a.label("L_epi")
    else:
        emit_loop(0)

    INLOOP[0] = False
    a.c("epilogue")
    stamp(a, 3)
    stampe(a, 1)
    P = V_E
    Y = V_E + 16
    T = V_E + 32
    VS, VM2 = V_O, V_O + 1
    U0, U1, U2, U3 = V_O + 2, V_O + 3, V_O + 4, V_O + 5
    U4, U5 = V_O + 6, V_O + 7
    ST = V_O + 8
    UM = V_O + 40
    OA0, OA1 = V_O + 42, V_O + 43
    a("s_waitcnt lgkmcnt(0)")
    a(f"s_cmp_eq_u32 s{S_KH}, 0")
    a("s_cbranch_scc0 L_ex1")
    for f in range(4):
        a(f"ds_write_b128 v{V_T0}, {vr(V_ACC+16+4*f,4)} offset:{f*1024}")
    a("s_branch L_ex2")
    a.label("L_ex1")
    for f in range(4):
        a(f"ds_write_b128 v{V_T0}, {vr(V_ACC+4*f,4)} offset:{f*1024}")
    a("s_nop 1")
    for v in range(16):
        a(f"v_mov_b32 v{V_ACC+v}, v{V_ACC+16+v}")
    a.label("L_ex2")
    a(f"v_lshl_or_b32 v{V_GB}, v{V_LANE}, 16, v{V_GB}")
    a(f"v_mbcnt_lo_u32_b32 v{V_LANE}, -1, 0")
    a(f"v_mbcnt_hi_u32_b32 v{V_LANE}, -1, v{V_LANE}")
    a(f"v_lshlrev_b32 v{V_BIAS}, 16, v{V_BIAS}")
    a(f"v_and_b32 v{U0}, 15, v{V_LANE}")
    a(f"s_lshl_b32 s{S_T0}, s{S_NQ}, 6")
    a(f"s_add_u32 s{S_T0}, s{S_T0}, {L_YT}")
    a(f"v_lshl_add_u32 v{U1}, v{U0}, 2, s{S_T0}")
    a(f"v_lshl_add_u32 v{U1}, v{V_T2}, 8, v{U1}")
    a(f"s_lshl_b32 s{S_T0}, s{S_KH}, 9")
    a(f"s_lshl_b32 s{S_T1}, s{S_NQ}, 7")
    a(f"s_add_u32 s{S_T0}, s{S_T0}, s{S_T1}")
    a(f"v_lshl_add_u32 v{U2}, v{U0}, 3, s{S_T0}")
    a(f"v_cvt_f32_u32 v{U3}, s{S_CNT}")
    a(f"v_rcp_f32 v{U3}, v{U3}")
    for v in range(0, 16, 2):
        pk(a, "add", Y + v, V_ACC + v, V_BIAS, mods="op_sel_hi:[1,0]")
    a("s_waitcnt vmcnt(0) lgkmcnt(0)")
    a("s_barrier")
    for f in range(4):
        a(f"ds_read_b128 {vr(P+4*f,4)}, v{V_T1} offset:{f*1024}")
    for f in range(4):
        a(f"s_waitcnt lgkmcnt({3-f})")
        pk(a, "add", Y + 4 * f, Y + 4 * f, P + 4 * f)
        pk(a, "add", Y + 4 * f + 2, Y + 4 * f + 2, P + 4 * f + 2)
    for v in range(16):
        a(f"v_cndmask_b32 v{T+v}, 0, v{Y+v}, {sr(MASKS[v],2)}")
    for st in (8, 4, 2):
        for v in range(0, st, 2):
            pk(a, "add", T + v, T + v, T + v + st)
    a(f"v_add_f32 v{VS}, v{T}, v{T+1}")
    cross4_sum(a, VS, U4, U5)
    a(f"v_mul_f32 v{UM}, v{VS}, v{U3}")
    for v in range(0, 16, 2):
        pk(a, "add", T + v, Y + v, UM, mods="op_sel_hi:[1,0] neg_lo:[0,1] neg_hi:[0,1]")
    for v in range(16):
        a(f"v_cndmask_b32 v{T+v}, 0, v{T+v}, {sr(MASKS[v],2)}")
    for v in range(0, 8, 2):
        pk(a, "mul", T + v, T + v, T + v)
    for v in range(0, 8, 2):
        pk(a, "fma", T + v, T + 8 + v, T + 8 + v, T + v)
    for st in (4, 2):
        for v in range(0, st, 2):
            pk(a, "add", T + v, T + v, T + v + st)
    a(f"v_add_f32 v{VM2}, v{T}, v{T+1}")
    cross4_sum(a, VM2, U4, U5)
    a(f"ds_write_b64 v{U2}, {vr(VS,2)} offset:{L_ST}")
    for v in range(16):
        f1, r = v >> 2, v & 3
        a(f"ds_write_b32 v{U1}, v{Y+v} offset:{(8*r+f1)*256}")
    a(f"v_lshrrev_b32 v{U0}, 3, v{V_LANE}")
    a(f"v_and_b32 v{U1}, 7, v{V_LANE}")
    a(f"s_lshl_b32 s{S_T0}, s{S_WAVE}, 12")
    a(f"s_add_u32 s{S_T0}, s{S_T0}, {L_YT}")
    a(f"v_lshl_add_u32 v{U2}, v{U0}, 8, s{S_T0}")
    a(f"v_lshl_add_u32 v{U2}, v{U1}, 5, v{U2}")
    a("s_waitcnt lgkmcnt(0)")
    a("s_barrier")
    Z = V_E
    a(f"s_cmp_lg_u32 s{S_WAVE}, 0")
    a("s_cbranch_scc1 L_notw0")
    stampe(a, 2)
    a(f"v_lshlrev_b32 v{U3}, 3, v{V_LANE}")
    a(f"ds_read_b64 {vr(T,2)}, v{U3} offset:{L_ST}")
    a(f"ds_read_b64 {vr(T+2,2)}, v{U3} offset:{L_ST+512}")
    a(f"s_lshl_b32 s{S_T0}, s{S_GRP}, 2")
    a(f"v_mov_b32 v{U5}, s{S_T0}")
    a(f"buffer_load_dword v{T+12}, v{U5}, {sr(SRD_DBG,4)}, 0 offen offset:{CNT_OFF} sc1")
    a(f"s_cmp_eq_u32 s{S_MT}, 15")
    a(f"s_cselect_b32 s{S_T0}, 37, 64")
    a(f"s_cselect_b32 s{S_T1}, 36, 64")
    a(f"v_cvt_f32_u32 v{T+4}, s{S_T0}")
    a(f"v_cvt_f32_u32 v{T+5}, s{S_T1}")
    a(f"v_cvt_f32_u32 v{T+6}, s{S_NVAL}")
    a(f"v_rcp_f32 v{T+7}, v{T+4}")
    a(f"v_rcp_f32 v{T+8}, v{T+5}")
    a(f"v_rcp_f32 v{T+9}, v{T+6}")
    a(f"s_lshl_b32 s{S_T0}, s{S_GRP}, 13")
    a(f"s_lshl_b32 s{S_T1}, s{S_MT}, 9")
    a(f"s_add_u32 s{S_T1}, s{S_T1}, s{S_T0}")
    a(f"v_add_u32 v{U4}, s{S_T0}, v{U3}")
    a(f"v_add_u32 v{U3}, s{S_T1}, v{U3}")
    a("s_waitcnt lgkmcnt(0)")
    a(f"v_add_f32 v{VS}, v{T}, v{T+2}")
    a(f"v_mul_f32 v{T+9}, v{VS}, v{T+9}")
    a(f"v_add_f32 v{VM2}, v{T+1}, v{T+3}")
    a(f"v_fma_f32 v{T+10}, v{T}, v{T+7}, -v{T+9}")
    a(f"v_fma_f32 v{T+11}, v{T+2}, v{T+8}, -v{T+9}")
    a(f"v_mul_f32 v{T+10}, v{T+10}, v{T+10}")
    a(f"v_mul_f32 v{T+11}, v{T+11}, v{T+11}")
    a(f"v_fmac_f32 v{VM2}, v{T+10}, v{T+4}")
    a(f"v_fmac_f32 v{VM2}, v{T+11}, v{T+5}")
    a(f"v_max_f32 v{VM2}, 0, v{VM2}")
    a(f"v_and_b32 v{VM2}, 0x7fffffff, v{VM2}")
    a(f"buffer_store_dwordx2 {vr(VS,2)}, v{U3}, {sr(SRD_WS,4)}, 0 offen sc1")
    a(f"s_mov_b32 s{S_T2}, 0")
    a(f"s_movk_i32 s{S_T3}, 4096")
    a("s_waitcnt vmcnt(1)")
    a.label("L_pollA")
    a(f"v_readfirstlane_b32 s{S_T1}, v{T+12}")
    a(f"s_add_u32 s{S_T2}, s{S_T2}, 1")
    a(f"s_cmp_ge_u32 s{S_T1}, 16")
    a("s_cbranch_scc1 L_pollB")
    a(f"buffer_load_dword v{T+12}, v{U5}, {sr(SRD_DBG,4)}, 0 offen offset:{CNT_OFF} sc1")
    a("s_waitcnt vmcnt(0)")
    a(f"s_cmp_lt_u32 s{S_T2}, 0x400000")
    a("s_cbranch_scc1 L_pollA")
    a.label("L_pollB")
    for i in range(16):
        so = "0" if i < 8 else f"s{S_T3}"
        a(f"buffer_load_dwordx2 {vr(ST+2*i,2)}, v{U4}, {sr(SRD_WS,4)}, {so} offen offset:{(i%8)*512} sc1")
    a("s_waitcnt vmcnt(0)")
    a(f"v_or3_b32 v{T}, v{ST+1}, v{ST+3}, v{ST+5}")
    a(f"v_or3_b32 v{T+1}, v{ST+7}, v{ST+9}, v{ST+11}")
    a(f"v_or3_b32 v{T+2}, v{ST+13}, v{ST+15}, v{ST+17}")
    a(f"v_or3_b32 v{T+3}, v{ST+19}, v{ST+21}, v{ST+23}")
    a(f"v_or3_b32 v{T+4}, v{ST+25}, v{ST+27}, v{ST+29}")
    a(f"v_or3_b32 v{T}, v{T}, v{T+1}, v{ST+31}")
    a(f"v_or3_b32 v{T+2}, v{T+2}, v{T+3}, v{T+4}")
    a(f"v_or_b32 v{T}, v{T}, v{T+2}")
    a(f"v_cmp_gt_i32 vcc, 0, v{T}")
    a(f"s_add_u32 s{S_T2}, s{S_T2}, 1")
    a("s_nop 3")
    a("s_cbranch_vccz L_got")
    a(f"s_cmp_lt_u32 s{S_T2}, 0x400000")
    a("s_cbranch_scc1 L_pollB")
    a.label("L_got")
    stamp(a, 4)
    stampe(a, 3)
    for i in range(8):
        pk(a, "add", T + 2 * i, ST + 2 * i, ST + 2 * i + 16)
    for st in (4, 2, 1):
        for v in range(st):
            pk(a, "add", T + 2 * v, T + 2 * v, T + 2 * (v + st))
    a(f"v_mul_f32 v{T}, {f2u(1.0/1993.0):#x}, v{T}")
    a(f"s_mov_b32 s{S_T0}, {f2u(1.0/128.0):#x}")
    a(f"s_mov_b32 s{S_T1}, {f2u(1.0/73.0):#x}")
    for i in range(16):
        a(f"v_fma_f32 v{ST+2*i}, v{ST+2*i}, s{S_T0 if i < 15 else S_T1}, -v{T}")
    for i in range(4):
        a(f"v_mul_f32 v{T+2+i}, v{ST+2*i}, v{ST+2*i}")
    for i in range(4, 15):
        a(f"v_fmac_f32 v{T+2+(i&3)}, v{ST+2*i}, v{ST+2*i}")
    a(f"v_mul_f32 v{ST+30}, v{ST+30}, v{ST+30}")
    a(f"v_add_f32 v{T+2}, v{T+2}, v{T+3}")
    a(f"v_add_f32 v{T+4}, v{T+4}, v{T+5}")
    a(f"v_fmac_f32 v{T+1}, 0x42920000, v{ST+30}")
    a(f"v_add_f32 v{T+2}, v{T+2}, v{T+4}")
    a(f"v_fmac_f32 v{T+1}, 0x43000000, v{T+2}")
    a(f"v_mov_b32 v{T+2}, {f2u(1e-5):#x}")
    a(f"v_fmac_f32 v{T+2}, {f2u(1.0/1993.0):#x}, v{T+1}")
    a(f"v_rsq_f32 v{T+2}, v{T+2}")
    a(f"v_lshlrev_b32 v{T+3}, 16, v{V_GB}")
    a(f"v_and_b32 v{T+4}, 0xffff0000, v{V_GB}")
    a(f"v_lshlrev_b32 v{U3}, 2, v{V_LANE}")
    a(f"v_mul_f32 v{T+2}, v{T+2}, v{T+3}")
    a(f"v_fma_f32 v{T+3}, -v{T}, v{T+2}, v{T+4}")
    a(f"ds_write_b32 v{U3}, v{T+2} offset:{L_SC}")
    a(f"ds_write_b32 v{U3}, v{T+3} offset:{L_SH}")
    a.label("L_notw0")
    for i2 in range(2):
        for half in range(2):
            a(f"ds_read_b128 {vr(Z+8*i2+4*half,4)}, v{U2} offset:{i2*2048+half*16}")
    a(f"s_lshl_b32 s{S_T0}, s{S_WAVE}, 4")
    a(f"s_lshl_b32 s{S_T1}, s{S_MT}, 7")
    a(f"s_add_u32 s{S_T0}, s{S_T0}, s{S_T1}")
    a(f"v_add_u32 v{U0}, s{S_T0}, v{U0}")
    a(f"v_add_u32 v{U3}, 8, v{U0}")
    a(f"s_mul_i32 s{S_T0}, s{S_B}, 2040832")
    a(f"s_lshl_b32 s{S_T1}, s{S_NT}, 7")
    a(f"s_add_u32 s{S_T0}, s{S_T0}, s{S_T1}")
    a(f"v_lshl_add_u32 v{U4}, v{U1}, 4, s{S_T0}")
    a(f"v_lshl_add_u32 v{OA0}, v{U0}, 10, v{U4}")
    a(f"v_lshl_add_u32 v{OA1}, v{U3}, 10, v{U4}")
    a(f"v_mov_b32 v{U4}, 0x7f000000")
    a(f"s_movk_i32 s{S_T0}, 1993")
    a(f"v_cmp_gt_u32 vcc, s{S_T0}, v{U0}")
    a(f"v_cmp_gt_u32 {sr(MASKS[0],2)}, s{S_T0}, v{U3}")
    a(f"v_lshlrev_b32 v{U1}, 5, v{U1}")
    a(f"v_cndmask_b32 v{OA0}, v{U4}, v{OA0}, vcc")
    a(f"v_cndmask_b32 v{OA1}, v{U4}, v{OA1}, {sr(MASKS[0],2)}")
    k0 = math.sqrt(2.0 / math.pi)
    c0 = -2.0 * k0 * math.log2(math.e)
    c1 = c0 * 0.044715
    C0, C1, ONE = V_O + 8, V_O + 10, V_O + 12
    a(f"v_mov_b32 v{C0}, {f2u(c0):#x}")
    a(f"v_mov_b32 v{C1}, {f2u(c1):#x}")
    a(f"v_mov_b32 v{ONE}, 1.0")
    a("s_waitcnt lgkmcnt(0)")
    a("s_barrier")
    SC, SH, E = V_E + 16, V_E + 24, V_E + 32
    a(f"ds_read_b128 {vr(SC,4)}, v{U1} offset:{L_SC}")
    a(f"ds_read_b128 {vr(SH,4)}, v{U1} offset:{L_SH}")
    a(f"ds_read_b128 {vr(SC+4,4)}, v{U1} offset:{L_SC+16}")
    a(f"ds_read_b128 {vr(SH+4,4)}, v{U1} offset:{L_SH+16}")
    a("s_waitcnt lgkmcnt(0)")
    for v in range(0, 16, 2):
        pk(a, "fma", Z + v, Z + v, SC + (v & 7), SH + (v & 7))
    for v in range(0, 16, 2):
        pk(a, "mul", E + v, Z + v, Z + v)
    for v in range(0, 16, 2):
        pk(a, "fma", E + v, E + v, C1, C0, mods="op_sel_hi:[1,0,0]")
    for v in range(0, 16, 2):
        pk(a, "mul", E + v, E + v, Z + v)
    for v in range(16):
        a(f"v_exp_f32 v{E+v}, v{E+v}")
    for v in range(0, 16, 2):
        pk(a, "add", E + v, E + v, ONE, mods="op_sel_hi:[1,0]")
    for v in range(16):
        a(f"v_rcp_f32 v{E+v}, v{E+v}")
    for v in range(0, 16, 2):
        pk(a, "mul", Z + v, Z + v, E + v)
    for v in range(8):
        a(f"v_cvt_pk_bf16_f32 v{E+v}, v{Z+2*v}, v{Z+2*v+1}")
    a(f"buffer_store_dwordx4 {vr(E,4)}, v{OA0}, {sr(SRD_OUT,4)}, 0 offen {OFLAG}")
    a(f"buffer_store_dwordx4 {vr(E+4,4)}, v{OA1}, {sr(SRD_OUT,4)}, 0 offen {OFLAG}")
    if DIAG:
        a(f"s_cmp_lg_u32 s{S_WAVE}, 0")
        a("s_cbranch_scc1 L_end")
        a("s_waitcnt vmcnt(0)")
        stampe(a, 4)
        stamp(a, 5, True)
        a("s_waitcnt lgkmcnt(0)")
        if DIAGH:
            a(f"v_mov_b32 v{V_T0}, 0")
            a(f"v_cmp_eq_u32 vcc, 0, v{V_LANE}")
            a("s_nop 1")
            a("s_and_saveexec_b64 s[74:75], vcc")
            a(f"v_mov_b32 v{V_T1}, s{STAMPS[5]}")
            a(f"buffer_atomic_umax v{V_T1}, v{V_T0}, {sr(SRD_DBG,4)}, 0 offen sc1")
            a(f"s_not_b32 s{S_T0}, s{STAMPS[0]}")
            a(f"v_mov_b32 v{V_T1}, s{S_T0}")
            a(f"buffer_atomic_umax v{V_T1}, v{V_T0}, {sr(SRD_DBG,4)}, 0 offen offset:4 sc1")
            a(f"v_mov_b32 v{V_T1}, s{STAMPS[0]}")
            a(f"buffer_atomic_umax v{V_T1}, v{V_T0}, {sr(SRD_DBG,4)}, 0 offen offset:8 sc1")
            for i in range(3):
                a(f"s_sub_u32 s{S_T0}, s{STAMPS[i+2]}, s{STAMPS[i+1]}")
                a(f"v_mov_b32 v{V_T1}, s{S_T0}")
                a(f"buffer_atomic_umax v{V_T1}, v{V_T0}, {sr(SRD_DBG,4)}, 0 offen offset:{12+4*i} sc1")
                a(f"buffer_atomic_add v{V_T1}, v{V_T0}, {sr(SRD_DBG,4)}, 0 offen offset:{24+4*i} sc1")
            a("s_mov_b64 exec, s[74:75]")
        a(f"s_lshl_b32 s{S_T0}, s2, 6")
        a(f"s_add_u32 s{S_T0}, s{S_T0}, 0x1000000")
        a(f"v_mov_b32 v{V_T0}, s{S_T0}")
        for i in range(6):
            a(f"v_mov_b32 v{V_T1}, s{STAMPS[i]}")
            a(f"buffer_store_dword v{V_T1}, v{V_T0}, {sr(SRD_WS,4)}, 0 offen offset:{4*i}")
    a.label("L_end")
    a("s_endpgm")

    a.label("L_helper")
    INLOOP[0] = False
    hq = VQ()
    V_WOFF_ODD = 12
    a(f"v_xor_b32 v{V_WOFF_ODD}, 64, v{V_WOFF}")

    def h_w(t):
        slot, sig = t % NSLOT, t % 15
        for w in range(8):
            a(f"s_mov_b32 m0, {WRING + slot*8192 + w*1024}")
            a(f"s_add_u32 s{S_T0}, s{S_SW}, {tap_of(sig)*524288 + w*8192}")
            a(f"buffer_load_dwordx4 v{V_WOFF if w % 2 == 0 else V_WOFF_ODD}, {sr(SRD_W,4)}, s{S_T0} offen lds")
            hq.issue(('W', t, w))

    def h_x(d0, d1):
        for d in range(d0, d1):
            a(f"s_mov_b32 m0, {XBUF + d*XBLK}")
            a(f"s_add_u32 s{S_T0}, s{S_SX+1}, {d*8192}")
            a(f"buffer_load_dwordx4 v{V_XOFF}, {sr(SRD_X,4)}, s{S_T0} offen lds")
            hq.issue(('X', d))

    def h_bar(u):
        f0, cnt = GROUPS[u + 2]
        need = [('W', f0 + k, w) for k in range(cnt) for w in range(8)]
        if u == GSW - 1:
            need += [('X', d) for d in range(34)]
        n = hq.need(need)
        if n is not None:
            a(f"s_waitcnt vmcnt({n})")
            hq.waited = max(hq.waited, len(hq.q) - 1 - n)
        if u < 0 or not AB_NOBAR:
            a("s_barrier")

    todo = [('w', t) for t in range(NPRE, NSLOT)] + [('x', 0), ('x', 9), ('x', 18), ('x', 26)]
    for _ in range(2):
        k, v = todo.pop(0)
        h_w(v)
    make_srd(a, SRD_WS, S_WS, WS_BYTES)
    make_srd(a, SRD_DBG, S_DBG, 256)
    make_srd(a, SRD_P, S_X, X_BYTES)
    a(f"s_lshl_b32 s{S_GRP}, s{S_B}, 3")
    a(f"s_add_u32 s{S_GRP}, s{S_GRP}, s{S_NT}")
    a(f"s_lshl_b32 s{S_T0}, s{S_GRP}, 13")
    a(f"s_lshl_b32 s{S_T1}, s{S_MT}, 9")
    a(f"s_add_u32 s{S_T1}, s{S_T1}, s{S_T0}")
    a(f"v_lshl_add_u32 v{V_T0}, v{V_LANE}, 3, s{S_T1}")
    a("v_mov_b32 v14, 0")
    a("v_mov_b32 v15, -1.0")
    a(f"buffer_store_dwordx2 v[14:15], v{V_T0}, {sr(SRD_WS,4)}, 0 offen sc1")
    hq.issue('clr')
    a(f"v_mov_b32 v{V_T2}, 0x7f000000")
    a(f"v_lshlrev_b32 v{V_T1}, 10, v{V_LANE}")
    a(f"v_add_u32 v{V_T1}, 384, v{V_T1}")
    a(f"s_mul_i32 s{S_T2}, s2, {32*1024}")
    a(f"s_mul_i32 s{S_T3}, s2, {30*1024}")
    a(f"v_cmp_gt_u32 vcc, 32, v{V_LANE}")
    a(f"v_cmp_gt_u32 s[72:73], 30, v{V_LANE}")
    a(f"s_lshl_b32 s{S_T1}, s{S_GRP}, 2")
    a(f"v_mov_b32 v18, s{S_T1}")
    a(f"v_cndmask_b32 v16, v{V_T2}, v{V_T1}, vcc")
    a(f"v_cndmask_b32 v17, v{V_T2}, v{V_T1}, s[72:73]")
    a("v_mov_b32 v19, 1")
    a(f"buffer_load_dword v20, v17, {sr(SRD_W,4)}, s{S_T3} offen")
    hq.issue('t0')
    a(f"buffer_load_dword v21, v16, {sr(SRD_P,4)}, s{S_T2} offen")
    hq.issue('t1')
    if L2PF:
        a(f"s_mul_i32 s{S_T1}, s{S_MT}, 60")
        a(f"v_add_u32 v22, s{S_T1}, v{V_LANE}")
        a("v_lshrrev_b32 v23, 6, v22")
        a("v_and_b32 v22, 63, v22")
        a("v_lshlrev_b32 v23, 19, v23")
        a("v_lshl_add_u32 v22, v22, 10, v23")
        a(f"s_lshl_b32 s{S_T1}, s{S_NT}, 7")
        a(f"v_add_u32 v22, s{S_T1}, v22")
        a(f"v_cmp_gt_u32 vcc, 60, v{V_LANE}")
        a("s_nop 1")
        a(f"v_cndmask_b32 v22, v{V_T2}, v22, vcc")
        a(f"buffer_load_dword v24, v22, {sr(SRD_W,4)}, s{S_SW+1} offen {PFFLAG}")
        hq.issue('p1')
        a(f"buffer_load_dword v25, v22, {sr(SRD_W,4)}, s{S_SW+2} offen {PFFLAG}")
        hq.issue('p2')
    def xlin():
        a(f"v_lshlrev_b32 v26, 7, v{V_LANE}")
        a(f"v_cmp_gt_u32 vcc, 58, v{V_LANE}")
        a(f"s_mul_i32 s{S_T2}, s2, {250*128}")
        a(f"v_cndmask_b32 v27, v{V_T2}, v26, vcc")
        for i in range(4):
            a(f"buffer_load_dword v{28+i}, v{26 if i < 3 else 27}, {sr(SRD_P,4)}, s{S_T2} offen")
            hq.issue(('xl', i))
            a(f"s_add_u32 s{S_T2}, s{S_T2}, 8192")

    def wlin():
        a(f"v_lshlrev_b32 v26, 7, v{V_LANE}")
        a(f"v_cmp_gt_u32 vcc, 48, v{V_LANE}")
        a(f"s_mul_i32 s{S_T2}, s2, {240*128}")
        a(f"v_cndmask_b32 v27, v{V_T2}, v26, vcc")
        for i in range(4):
            a(f"buffer_load_dword v{32+i}, v{26 if i < 3 else 27}, {sr(SRD_W,4)}, s{S_T2} offen")
            hq.issue(('wl', i))
            a(f"s_add_u32 s{S_T2}, s{S_T2}, 8192")

    if XLIN == 1:
        xlin()
    k, v = todo.pop(0)
    h_w(v)
    h_bar(-1)
    if XLIN == 2:
        xlin()
    u = 0
    xend = {0: 9, 9: 18, 18: 26, 26: 34}
    while todo:
        for _ in range(2):
            if todo:
                k, v = todo.pop(0)
                if k == 'w':
                    h_w(v)
                else:
                    h_x(v, xend[v])
        h_bar(u)
        u += 1
    assert hq.waited > hq.q.index('clr')
    if XLIN == 3:
        xlin()
    if WLIN:
        wlin()
    a(f"v_cmp_eq_u32 vcc, 0, v{V_LANE}")
    a("s_nop 1")
    a("s_and_saveexec_b64 s[74:75], vcc")
    a(f"buffer_atomic_add v19, v18, {sr(SRD_DBG,4)}, 0 offen offset:{CNT_OFF} sc1")
    hq.issue('atom')
    a("s_mov_b64 exec, s[74:75]")
    while u <= GSW:
        h_bar(u)
        u += 1
    if L2PF:
        while u < 8:
            a("s_barrier")
            u += 1
        a(f"s_mov_b32 s{S_T0}, 3")
        a.label("L_hloop")
        a(f"s_add_u32 s{S_T1}, s{S_T0}, s{S_K}")
        a(f"s_and_b32 s{S_T1}, s{S_T1}, 7")
        a(f"s_lshl_b32 s{S_T1}, s{S_T1}, 16")
        a(f"buffer_load_dword v24, v22, {sr(SRD_W,4)}, s{S_T1} offen {PFFLAG}")
        for _ in range(8):
            a("s_barrier")
        a(f"s_add_u32 s{S_T0}, s{S_T0}, 1")
        a(f"s_cmp_lt_u32 s{S_T0}, 8")
        a("s_cbranch_scc1 L_hloop")
    else:
        a(f"s_mov_b32 s{S_T0}, 0")
        a.label("L_hloop")
        if not AB_NOBAR:
            a("s_barrier")
        a(f"s_add_u32 s{S_T0}, s{S_T0}, 1")
        a(f"s_cmp_lt_u32 s{S_T0}, 16")
        a("s_cbranch_scc1 L_hloop")
    a("s_waitcnt vmcnt(0)")
    a("s_endpgm")


def kd(name, nvgpr):
    acc = (nvgpr + 3) // 4 * 4
    return f""".p2align 6
.amdhsa_kernel {name}
  .amdhsa_next_free_vgpr {nvgpr}
  .amdhsa_next_free_sgpr 102
  .amdhsa_accum_offset {acc}
  .amdhsa_group_segment_fixed_size 0
  .amdhsa_kernarg_size 64
  .amdhsa_user_sgpr_count 2
  .amdhsa_user_sgpr_kernarg_segment_ptr 1
  .amdhsa_system_sgpr_workgroup_id_x 1
  .amdhsa_float_denorm_mode_32 3
.end_amdhsa_kernel
"""


def main():
    args = [x for x in ARGS if not x.startswith("-")]
    out = args[0] if args else f"cdna_kernels/{NAME}.s"
    hdr = f"""; conv stem (HuBERT): conv1d(k=15,s=2) as implicit GEMM + per-channel norm over time + GELU, one fused kernel
; @launch grid=(256,1,1) block=(576,1,1) lds={LDS1}
.amdgcn_target "amdgcn-amd-amdhsa--gfx950"
.text
"""
    a = Asm()
    gen_kernel(a)
    txt = hdr + a.text() + '.section .rodata,"a"\n' + kd(NAME + "_kernel", NVGPR)
    open(out, "w").write(txt)


if __name__ == "__main__":
    main()
```

```python
import sys
import struct
import math

NAME = "standalone__self_sup_conv_stem_hubert__speech"
ARGS = sys.argv[1:]
DIAG = "--diag" in ARGS
DIAGE = "--diage" in ARGS
DIAGI = "--diagi" in ARGS
DIAGP = "--diagp" in ARGS


def stampp(a, i):
    if DIAGP:
        a(f"s_memtime s[{STAMPS[i]}:{STAMPS[i]+1}]")

DIAGW = "--diagw" in ARGS
DIAGH = "--diagh" in ARGS
if DIAGH:
    DIAG = True
CNT_OFF = 64 if DIAGH else 0
OFLAG = "sc1"
for _a in ARGS:
    if _a.startswith("--oflag="):
        OFLAG = _a[8:].replace("+", " ")
STAG = "--stag" in ARGS
AB_NODMA = "--ab_nodma" in ARGS
AB_NOREAD = "--ab_noread" in ARGS
AB_NOBAR = "--ab_nobar" in ARGS
AB_ZDMA = "--ab_zdma" in ARGS
AB_NOA = "--ab_noa" in ARGS
BP = 1
G0 = "--g0" in ARGS
for _a in ARGS:
    if _a.startswith("--bp="):
        BP = int(_a[5:])
HPRE = 3
HPER = 2
for _a in ARGS:
    if _a.startswith("--hpre="):
        HPRE = int(_a[7:])
    if _a.startswith("--hper="):
        HPER = int(_a[7:])
XLIN = 0
WLIN = "--wlin" in ARGS
for _a in ARGS:
    if _a.startswith("--xlin="):
        XLIN = int(_a[7:])
ROTV = "k"
for _a in ARGS:
    if _a.startswith("--rotv="):
        ROTV = _a[7:]
L2PF = "--l2pf" in ARGS
PFFLAG = "sc1" if "--pfsc1" in ARGS else ""
FINE = "--fine" in ARGS
FINE_TAIL = 0
for _a in ARGS:
    if _a.startswith("--ftail="):
        FINE_TAIL = int(_a[8:])
FRONT = 0
for _a in ARGS:
    if _a.startswith("--front="):
        FRONT = int(_a[8:])
TWO = 2 if "--two2" in ARGS else (1 if "--two" in ARGS else 0)
DSPLIT = 2 if "--dsplit2" in ARGS else (1 if "--dsplit" in ARGS else 0)
AB_NOWAIT = "--ab_nowait" in ARGS
INLOOP = [False]
P2 = 9
for _a in ARGS:
    if _a.startswith("--p2="):
        P2 = int(_a[5:])
NPRE = 4
for _a in ARGS:
    if _a.startswith("--npre="):
        NPRE = int(_a[7:])

X_BYTES = 2 * 4000 * 512 * 2
W_BYTES = 15 * 512 * 512 * 2
OUT_BYTES = 2 * 1993 * 512 * 2
WS_BYTES = 268435456
XBLK = 1040
XBUF = 34 * XBLK
WRING = 2 * XBUF
NSLOT = 10
LDS1 = WRING + NSLOT * 8192
L_ST, L_SC, L_SH, L_EX, L_YT = 0, 1024, 1280, 2048, XBUF


def f2u(x):
    return struct.unpack("<I", struct.pack("<f", x))[0]


class Asm:
    def __init__(self):
        self.lines = []

    def __call__(self, s):
        if INLOOP[0] and "--ab_salu" in ARGS and s.startswith("buffer_load_dwordx4"):
            return
        if INLOOP[0] and "--ab_nosalu" in ARGS and (s.startswith("s_add_u32 m0") or s.startswith("s_add_u32 s57") or s.startswith("s_add_u32 s58") or s.startswith("s_mov_b32 s58")):
            return
        if INLOOP[0] and "--ab_dw" in ARGS and s.startswith("buffer_load_dwordx4"):
            s = s.replace("buffer_load_dwordx4", "buffer_load_dword")
        self.lines.append("    " + s)

    def label(self, l):
        self.lines.append(l + ":")

    def c(self, s):
        self.lines.append("    ; " + s)

    def text(self):
        return "\n".join(self.lines) + "\n"


def vr(a, n=1):
    return f"v{a}" if n == 1 else f"v[{a}:{a+n-1}]"


def sr(a, n=1):
    return f"s{a}" if n == 1 else f"s[{a}:{a+n-1}]"


V_GB = 0
V_LANE, V_T0, V_T1, V_T2 = 1, 2, 3, 4
V_BADDR2, V_AADDR, V_BADDR, V_WOFF, V_XOFF, V_BIAS, V_XOFF5 = 5, 6, 7, 8, 9, 10, 11
V_E = 12
V_O = 72
V_B = 120
V_ACC = 136
NVGPR = 168

S_X, S_W, S_BI, S_GA = 4, 6, 8, 10
S_BE, S_OUT, S_DBG, S_WS = 12, 14, 16, 18
SRD_X, SRD_W, SRD_WS, SRD_P = 20, 24, 28, 32
SRD_OUT, SRD_DBG = 36, 40
S_K, S_Q, S_B, S_NT, S_MT = 44, 45, 46, 47, 48
S_WAVE, S_KH, S_NQ, S_WM0, S_XM0, S_XM05 = 49, 50, 51, 52, 53, 54
S_ITW, S_IT, S_T0, S_T1, S_T2, S_T3 = 55, 56, 57, 58, 59, 60
S_SW = 61
S_SX = 65
S_NVAL, S_CNT, S_GRP = 69, 70, 71
MASKS = list(range(4, 20, 2)) + list(range(72, 88, 2))
S_WV = 88
STAMPS = [90, 92, 94, 96, 98, 100]


def stampe(a, i):
    if DIAGE:
        a(f"s_memtime s[{STAMPS[i]}:{STAMPS[i]+1}]")


def stamp(a, i, rt=False):
    if DIAGP and not rt:
        if i == 1:
            a(f"s_memtime s[{STAMPS[1]}:{STAMPS[1]+1}]")
        return
    if DIAGI and not rt:
        if i == 2:
            a(f"s_memtime s[{STAMPS[1]}:{STAMPS[1]+1}]")
        return
    if DIAGW and not rt:
        if i == 2:
            a(f"s_memtime s[{STAMPS[1]}:{STAMPS[1]+1}]")
            a(f"s_memrealtime s[{STAMPS[2]}:{STAMPS[2]+1}]")
        if i == 3:
            a(f"s_memtime s[{STAMPS[3]}:{STAMPS[3]+1}]")
            a(f"s_memrealtime s[{STAMPS[4]}:{STAMPS[4]+1}]")
        return
    if DIAG and (rt or not DIAGE):
        a(f"s_mem{'real' if rt else ''}time s[{STAMPS[i]}:{STAMPS[i]+1}]")


def frag(par, g):
    if par == 0 or g < 2:
        return V_E + 4 * g
    return V_O + 4 * (g - 2)


def tap_of(sig):
    return 2 * sig if sig < 8 else 2 * (sig - 8) + 1


def make_srd(a, srd, base, nbytes):
    a(f"s_mov_b32 s{srd}, s{base}")
    a(f"s_and_b32 s{srd+1}, s{base+1}, 0xffff")
    a(f"s_mov_b32 s{srd+2}, {nbytes}")
    a(f"s_mov_b32 s{srd+3}, 0x00020000")


class VQ:
    def __init__(self):
        self.q = []
        self.waited = -1

    def issue(self, tag):
        self.q.append(tag)

    def need(self, tags):
        idx = [self.q.index(t) for t in tags if t in self.q]
        if not idx:
            return None
        return len(self.q) - 1 - max(idx)


GROUPS = [(0, 2), (2, 2), (4, 2), (6, 2), (8, 2), (10, 2), (12, 2), (14, 1)]
GSW = 5
A_SCHED = {0: [(0, 9), (0, 10), (0, 11), (0, 12)],
           1: [(0, 13), (0, 14), (1, 2), (1, 3)],
           2: [(1, 0), (1, 1), (1, 4), (1, 5)],
           3: [(1, 6), (1, 7), (1, 8), (1, 9)],
           4: [(1, 10), (1, 11), (1, 12), (1, 13)],
           5: [(0, 0), (0, 1), (0, 2), (0, 3)],
           6: [(0, 4), (0, 5), (0, 6), (0, 7)],
           7: [(0, 8)]}
X_SCHED = {5: [0, 1], 6: [2, 3], 7: [4]}


def breg(gi, k):
    return V_B + 8 * (gi & 1) + 4 * k


def stage_regs(a):
    for rel in range(4):
        a(f"s_add_u32 s{S_T0}, s{S_ITW}, {rel}")
        a(f"s_and_b32 s{S_T0}, s{S_T0}, 7")
        a(f"s_lshl_b32 s{S_SW+rel}, s{S_T0}, 16")
        a(f"s_lshl_b32 s{S_SX+rel}, s{S_T0}, 7")


def a_read(a, par, g, buf):
    if INLOOP[0] and (AB_NOREAD or AB_NOA):
        return
    e = 2 * g + par
    off = buf * XBUF + (e >> 3) * XBLK + (e & 7) * 128
    a(f"ds_read_b128 {vr(frag(par, g), 4)}, v{V_AADDR} offset:{off}")


def b_read(a, t, b):
    if INLOOP[0] and AB_NOREAD:
        return
    slot = t % NSLOT
    va, sl = (V_BADDR, slot) if slot < 5 else (V_BADDR2, slot - 5)
    a(f"ds_read_b64_tr_b16 {vr(b, 2)}, v{va} offset:{sl*8192}")
    a(f"ds_read_b64_tr_b16 {vr(b+2, 2)}, v{va} offset:{sl*8192+512}")


def w_dma(a, trel):
    if INLOOP[0] and AB_NODMA:
        return
    slot = trel % NSLOT
    srel, sig = trel // 15, trel % 15
    a(f"s_add_u32 m0, s{S_WM0}, {slot*8192}")
    a(f"s_add_u32 s{S_T0}, s{S_SW+srel}, {tap_of(sig) * 524288}")
    a(f"buffer_load_dwordx4 v{V_WOFF}, {sr(SRD_W,4)}, s{S_T0} offen lds")


def x_dma(a, srel, j):
    if INLOOP[0] and AB_NODMA:
        return
    buf = srel & 1
    if j < 4:
        a(f"s_add_u32 m0, s{S_XM0}, {buf*XBUF + j*8*XBLK}")
        a(f"s_add_u32 s{S_T1}, s{S_SX+srel}, {j*65536}")
        a(f"buffer_load_dwordx4 v{V_XOFF}, {sr(SRD_X,4)}, s{S_T1} offen lds")
    else:
        a(f"s_add_u32 m0, s{S_XM05}, {buf*XBUF}")
        a(f"s_mov_b32 s{S_T1}, s{S_SX+srel}")
        a(f"buffer_load_dwordx4 v{V_XOFF5}, {sr(SRD_X,4)}, s{S_T1} offen lds")


def mfma(a, f, sig, b):
    acc = V_ACC + 4 * f
    par, j = (0, sig) if sig < 8 else (1, sig - 8)
    g = j + f
    a(f"v_mfma_f32_16x16x32_bf16 {vr(acc,4)}, {vr(frag(par,g),4)}, {vr(b,4)}, {vr(acc,4)}")


def cross4_sum(a, v, t0, t1):
    a(f"v_mov_b32 v{t0}, v{v}")
    a(f"v_mov_b32 v{t1}, v{v}")
    a("s_nop 1")
    a(f"v_permlane32_swap_b32 v{t0}, v{t1}")
    a("s_nop 1")
    a(f"v_add_f32 v{v}, v{t0}, v{t1}")
    a(f"v_mov_b32 v{t0}, v{v}")
    a(f"v_mov_b32 v{t1}, v{v}")
    a("s_nop 1")
    a(f"v_permlane16_swap_b32 v{t0}, v{t1}")
    a("s_nop 1")
    a(f"v_add_f32 v{v}, v{t0}, v{t1}")


def pk(a, op, d, s0, s1, s2=None, mods=""):
    ops = f"{vr(d,2)}, {vr(s0,2)}, {vr(s1,2)}" + (f", {vr(s2,2)}" if s2 is not None else "")
    a(f"v_pk_{op}_f32 {ops} {mods}".rstrip())


def gen_kernel(a):
    kname = NAME + "_kernel"
    a.lines.append(f".globl {kname}")
    a.lines.append(".p2align 8")
    a.lines.append(f".type {kname},@function")
    a.label(kname)
    a("s_cmp_ge_u32 s2, 256")
    a("s_cbranch_scc1 L_end")
    stamp(a, 0, True)
    stamp(a, 1)
    a(f"s_load_dwordx16 {sr(S_X,16)}, s[0:1], 0")
    a(f"v_lshrrev_b32 v{V_T0}, 6, v0")
    a(f"v_and_b32 v{V_LANE}, 63, v0")
    a(f"v_readfirstlane_b32 s{S_WAVE}, v{V_T0}")
    a(f"s_and_b32 s{S_K}, s2, 7")
    a(f"s_lshr_b32 s{S_Q}, s2, 3")
    a(f"s_lshr_b32 s{S_B}, s{S_K}, 2")
    a(f"s_and_b32 s{S_NT}, s{S_K}, 3")
    a(f"s_lshl_b32 s{S_NT}, s{S_NT}, 1")
    a(f"s_lshr_b32 s{S_T0}, s{S_Q}, 4")
    a(f"s_add_u32 s{S_NT}, s{S_NT}, s{S_T0}")
    a(f"s_and_b32 s{S_MT}, s{S_Q}, 15")
    a(f"s_and_b32 s{S_WV}, s{S_WAVE}, 7")
    a(f"v_lshrrev_b32 v{V_T0}, 3, v{V_LANE}")
    a(f"v_and_b32 v{V_T1}, 7, v{V_LANE}")
    a(f"v_lshlrev_b32 v{V_T2}, 10, v{V_T0}")
    a(f"v_lshl_add_u32 v{V_T2}, v{V_T1}, 4, v{V_T2}")
    a(f"s_lshl_b32 s{S_T0}, s{S_WV}, 13")
    a(f"v_add_u32 v{V_XOFF}, s{S_T0}, v{V_T2}")
    a(f"s_and_b32 s{S_T1}, s{S_WV}, 1")
    a(f"s_add_u32 s{S_T2}, s{S_T1}, 32")
    a(f"s_lshl_b32 s{S_T3}, s{S_T2}, 13")
    a(f"v_add_u32 v{V_XOFF5}, s{S_T3}, v{V_T2}")
    a(f"s_mul_i32 s{S_XM05}, s{S_T2}, {XBLK}")
    a(f"s_mul_i32 s{S_XM0}, s{S_WV}, {XBLK}")
    a(f"v_bfe_u32 v{V_T2}, v{V_LANE}, 4, 1")
    a(f"s_lshl_b32 s{S_T1}, s{S_T1}, 1")
    a(f"v_or_b32 v{V_T2}, s{S_T1}, v{V_T2}")
    a(f"v_lshlrev_b32 v{V_T2}, 1, v{V_T2}")
    a(f"v_xor_b32 v{V_T2}, v{V_T2}, v{V_T1}")
    a(f"v_lshlrev_b32 v{V_WOFF}, 10, v{V_T0}")
    a(f"v_lshl_add_u32 v{V_WOFF}, v{V_T2}, 4, v{V_WOFF}")
    a(f"s_lshl_b32 s{S_T1}, s{S_NT}, 7")
    a(f"s_add_u32 s{S_T1}, s{S_T1}, s{S_T0}")
    a(f"v_add_u32 v{V_WOFF}, s{S_T1}, v{V_WOFF}")
    a(f"s_lshl_b32 s{S_WM0}, s{S_WV}, 10")
    a(f"s_add_u32 s{S_WM0}, s{S_WM0}, {WRING}")
    if ROTV == "k":
        a(f"s_mov_b32 s{S_ITW}, s{S_K}")
    elif ROTV == "0":
        a(f"s_mov_b32 s{S_ITW}, 0")
    elif ROTV == "b4":
        a(f"s_lshl_b32 s{S_ITW}, s{S_B}, 2")
    elif ROTV == "k1x4":
        a(f"s_and_b32 s{S_ITW}, s{S_K}, 1")
        a(f"s_lshl_b32 s{S_ITW}, s{S_ITW}, 2")
    elif ROTV == "k3x2":
        a(f"s_and_b32 s{S_ITW}, s{S_K}, 3")
        a(f"s_lshl_b32 s{S_ITW}, s{S_ITW}, 1")
    elif ROTV == "k3":
        a(f"s_and_b32 s{S_ITW}, s{S_K}, 3")
    elif ROTV == "k1":
        a(f"s_and_b32 s{S_ITW}, s{S_K}, 1")
    stage_regs(a)
    a(f"s_mul_i32 s{S_T0}, s{S_B}, 4096000")
    a(f"s_lshl_b32 s{S_T1}, s{S_MT}, 18")
    a(f"s_add_u32 s{S_T2}, s{S_T0}, s{S_T1}")
    a("s_waitcnt lgkmcnt(0)")
    a(f"s_add_u32 s{SRD_X}, s{S_X}, s{S_T2}")
    a(f"s_addc_u32 s{SRD_X+1}, s{S_X+1}, 0")
    a(f"s_and_b32 s{SRD_X+1}, s{SRD_X+1}, 0xffff")
    a(f"s_sub_u32 s{SRD_X+2}, 4096000, s{S_T1}")
    a(f"s_mov_b32 s{SRD_X+3}, 0x00020000")
    make_srd(a, SRD_W, S_W, W_BYTES)
    a(f"s_cmp_eq_u32 s{S_WAVE}, 8")
    a("s_cbranch_scc1 L_helper")
    stampp(a, 2)

    q = VQ()
    for j in range(5):
        x_dma(a, 0, j)
        q.issue(('X', 0, j))
    for t in range(NPRE):
        w_dma(a, t)
        q.issue(('W', t))
    a(f"s_lshr_b32 s{S_KH}, s{S_WAVE}, 2")
    a(f"s_and_b32 s{S_NQ}, s{S_WAVE}, 3")
    a(f"s_lshl_b32 s{S_GRP}, s{S_B}, 3")
    a(f"s_add_u32 s{S_GRP}, s{S_GRP}, s{S_NT}")
    a(f"s_mov_b32 s{S_IT}, 0")
    a(f"v_and_b32 v{V_T0}, 15, v{V_LANE}")
    a(f"v_lshrrev_b32 v{V_T1}, 4, v{V_LANE}")
    make_srd(a, SRD_P, S_BI, 1024)
    a(f"s_lshl_b32 s{S_T0}, s{S_NT}, 7")
    a(f"s_lshl_b32 s{S_T1}, s{S_NQ}, 5")
    a(f"s_add_u32 s{S_T1}, s{S_T0}, s{S_T1}")
    a(f"v_lshl_add_u32 v{V_T2}, v{V_T0}, 1, s{S_T1}")
    a(f"buffer_load_ushort v{V_BIAS}, v{V_T2}, {sr(SRD_P,4)}, 0 offen")
    q.issue('bias')
    a(f"v_lshl_add_u32 v{V_T2}, v{V_LANE}, 1, s{S_T0}")
    make_srd(a, SRD_P, S_GA, 1024)
    a(f"buffer_load_ushort v{V_GB}, v{V_T2}, {sr(SRD_P,4)}, 0 offen")
    q.issue('gamma')
    make_srd(a, SRD_P, S_BE, 1024)
    a(f"v_mov_b32 v{V_B}, v{V_T2}")
    make_srd(a, SRD_WS, S_WS, WS_BYTES)
    make_srd(a, SRD_OUT, S_OUT, OUT_BYTES)
    make_srd(a, SRD_DBG, S_DBG, 256)
    a(f"v_mul_u32_u24 v{V_AADDR}, {2*XBLK}, v{V_T0}")
    a(f"s_lshl_b32 s{S_T0}, s{S_KH}, 2")
    a(f"v_add_u32 v{V_T2}, s{S_T0}, v{V_T1}")
    a(f"v_lshl_add_u32 v{V_AADDR}, v{V_T2}, 4, v{V_AADDR}")
    a(f"v_bfe_u32 v{V_T2}, v{V_LANE}, 2, 2")
    a(f"v_lshl_add_u32 v{V_BADDR}, v{V_T1}, 3, v{V_T2}")
    a(f"v_lshlrev_b32 v{V_BADDR}, 7, v{V_BADDR}")
    a(f"v_bfe_u32 v{V_T2}, v{V_LANE}, 3, 2")
    a(f"v_xor_b32 v{V_T2}, s{S_NQ}, v{V_T2}")
    a(f"v_lshl_add_u32 v{V_BADDR}, v{V_T2}, 5, v{V_BADDR}")
    a(f"v_and_b32 v{V_T2}, 3, v{V_LANE}")
    a(f"v_lshl_add_u32 v{V_BADDR}, v{V_T2}, 3, v{V_BADDR}")
    a(f"s_lshl_b32 s{S_T1}, s{S_KH}, 12")
    a(f"s_add_u32 s{S_T1}, s{S_T1}, {WRING}")
    a(f"v_add_u32 v{V_BADDR}, s{S_T1}, v{V_BADDR}")
    a(f"v_add_u32 v{V_BADDR2}, {5*8192}, v{V_BADDR}")
    a(f"s_movk_i32 s{S_NVAL}, 128")
    a(f"s_sub_u32 s{S_T1}, 37, s{S_KH}")
    a(f"s_cmp_eq_u32 s{S_MT}, 15")
    a(f"s_cselect_b32 s{S_NVAL}, 73, s{S_NVAL}")
    a(f"s_cselect_b32 s{S_CNT}, s{S_T1}, 64")
    a(f"v_lshl_add_u32 v{V_T2}, v{V_T1}, 5, s{S_T0}")
    for v in range(16):
        f1, r = v >> 2, v & 3
        a(f"s_sub_i32 s{S_T1}, s{S_NVAL}, {8*r+f1}")
        a(f"v_cmp_gt_i32 {sr(MASKS[v],2)}, s{S_T1}, v{V_T2}")
    a(f"s_lshl_b32 s{S_T0}, s{S_NQ}, 13")
    a(f"s_lshl_b32 s{S_T1}, s{S_KH}, 12")
    a(f"s_add_u32 s{S_T2}, s{S_T0}, s{S_T1}")
    a(f"s_add_u32 s{S_T2}, s{S_T2}, {L_EX}")
    a(f"s_xor_b32 s{S_T3}, s{S_T2}, 4096")
    a(f"v_lshl_add_u32 v{V_T0}, v{V_LANE}, 4, s{S_T3}")
    a(f"v_lshl_add_u32 v{V_T1}, v{V_LANE}, 4, s{S_T2}")
    a(f"buffer_load_ushort v{V_LANE}, v{V_B}, {sr(SRD_P,4)}, 0 offen")
    q.issue('beta')
    for i in range(32):
        a(f"v_mov_b32 v{V_ACC+i}, 0")
    n = q.need([('X', 0, j) for j in range(5)] + [('W', t) for t in range(NPRE)])
    stampp(a, 3)
    a(f"s_waitcnt vmcnt({n})")
    if "--diagp2" in ARGS:
        a("s_barrier")
        stampp(a, 4)
    else:
        stampp(a, 4)
        a("s_barrier")
    b_read(a, 0, breg(0, 0))
    b_read(a, 1, breg(0, 1))
    for gi in range(GSW, 8):
        for (par, g) in A_SCHED[gi]:
            a_read(a, par, g, 0)

    def gsteps(G):
        s_, gi = G // 8, G % 8
        f0, cnt = GROUPS[gi]
        return [15 * s_ + f0 + k for k in range(cnt)]

    waits = {}
    for it in range(4):
        for gb in range(16):
            G = 16 * it + gb
            s_, gi = G // 8, G % 8
            need = [('W', t) for t in gsteps(G + 2) if t >= NPRE]
            if gi == GSW - 1:
                need += [('X', s_ + 1, j) for j in range(5)]
            n = q.need(need)
            if n is not None:
                waits[gb] = min(waits.get(gb, 99), n)
            xs = list(X_SCHED.get(gi, []))
            for t in gsteps(G):
                q.issue(('W', t + NSLOT))
                if xs:
                    q.issue(('X', s_ + 2, xs.pop(0)))

    if DSPLIT == 2:
        a(f"s_and_b32 s{S_T0}, s{S_WAVE}, 1")
        a(f"s_cmp_eq_u32 s{S_T0}, 1")
        a("s_cselect_b64 vcc, -1, 0")
    elif STAG or DSPLIT:
        a(f"s_cmp_ge_u32 s{S_WAVE}, 4")
        a("s_cselect_b64 vcc, -1, 0")
    if AB_NOREAD or AB_NOA:
        for g in range(15):
            a_read(a, 0, g, 0)
        for g in range(2, 14):
            a_read(a, 1, g, 0)
        b_read(a, 2, breg(1, 0))
        b_read(a, 3, breg(1, 1))
    if AB_ZDMA:
        a(f"s_mov_b32 s{SRD_X+2}, 0")
        a(f"s_mov_b32 s{SRD_W+2}, 0")
    if "--prio" in ARGS:
        a(f"s_cmp_ge_u32 s{S_WAVE}, 4")
        a("s_cbranch_scc0 L_noprio")
        a("s_setprio 1")
        a.label("L_noprio")
    if "--prio0" in ARGS:
        a(f"s_cmp_lt_u32 s{S_WAVE}, 4")
        a("s_cbranch_scc0 L_noprio")
        a("s_setprio 1")
        a.label("L_noprio")
    INLOOP[0] = True
    stamp(a, 2)
    def emit_loop(variant):
        a.label(f"L_loop{variant}")
        for gb in range(16):
            srel, gi = gb // 8, gb % 8
            f0, cnt = GROUPS[gi]
            u0 = 15 * srel + f0
            ncnt = GROUPS[(gi + 1) % 8][1]
            a.c(f"group {gb}: stage_rel={srel} steps {f0}..{f0+cnt-1}")
            buf = (srel + (1 if gi >= GSW else 0)) & 1
            early = []
            late = []
            for k in range(ncnt):
                early.append(lambda k=k: b_read(a, u0 + cnt + k, breg(gb + 1, k)))
            for r in A_SCHED[gi]:
                early.append(lambda r=r: a_read(a, r[0], r[1], buf))
            xs = list(X_SCHED.get(gi, []))
            for k in range(cnt):
                def wd(k=k):
                    if u0 + k == 30 - NSLOT:
                        a(f"s_cmp_eq_u32 s{S_IT}, 3")
                        a(f"s_cselect_b32 s{SRD_W+2}, 0, s{SRD_W+2}")
                    w_dma(a, u0 + k + NSLOT)
                late.append(wd)
                if xs:
                    def xd(j=xs.pop(0), first=(k == 0)):
                        if gb == GSW and first:
                            a(f"s_cmp_eq_u32 s{S_IT}, 3")
                            a(f"s_cselect_b32 s{SRD_X+2}, 0, s{SRD_X+2}")
                        x_dma(a, srel + 2, j)
                    late.append(xd)
            mf = [(f, k) for f in range(8) for k in range(cnt)]
            nm = len(mf)
            p1 = 1
            p2 = (P2 if cnt == 2 else P2 // 2) if STAG else 1
            ends = [i for i in range(nm - 1) if (i + 1) % cnt == 0]
            es = [i for i in ends if i <= max(p2, nm // 2 + 1)]
            ls = [i for i in ends if i >= p2]
            if not STAG:
                es = [i for i in ends]
                ls = [i for i in ends if i >= (1 if (DSPLIT or TWO) else 3)]
                if FRONT:
                    lim = FRONT if cnt == 2 else (FRONT + 1) // 2
                    es = [i for i in ends if i <= lim]
                    ls = [i for i in ends if 1 <= i <= lim]
            place = {}
            for idx, it_ in enumerate(early):
                place.setdefault(es[idx * len(es) // len(early)], []).append(it_)
            if TWO:
                half = len(ls) // 2
                lsel = ls[:half] if variant == 0 else ls[half:]
                for idx, it_ in enumerate(late):
                    place.setdefault(lsel[idx * len(lsel) // len(late)], []).append(it_)
            elif DSPLIT:
                half = len(ls) // 2
                la, lb = ls[:half], ls[half:]
                for idx, it_ in enumerate(late):
                    def ga(it_=it_, idx=idx):
                        a(f"s_cbranch_vccnz L_da_{gb}_{idx}")
                        it_()
                        a.label(f"L_da_{gb}_{idx}")
                    def gbb(it_=it_, idx=idx):
                        a(f"s_cbranch_vccz L_db_{gb}_{idx}")
                        it_()
                        a.label(f"L_db_{gb}_{idx}")
                    place.setdefault(la[idx * len(la) // len(late)], []).append(ga)
                    place.setdefault(lb[idx * len(lb) // len(late)], []).append(gbb)
            else:
                for idx, it_ in enumerate(late):
                    place.setdefault(ls[idx * len(ls) // len(late)], []).append(it_)
            if FINE:
                def flat(items):
                    out = []
                    for it_ in items:
                        n0 = len(a.lines)
                        it_()
                        out.append(a.lines[n0:])
                        del a.lines[n0:]
                    return out
                fe, fl = flat(early), flat(late)
                def split(groups):
                    out = []
                    for g_ in groups:
                        i_ = 0
                        while i_ < len(g_):
                            if "s_cmp_eq" in g_[i_]:
                                out.append(g_[i_:i_ + 2])
                                i_ += 2
                            else:
                                out.append([g_[i_]])
                                i_ += 1
                    return out
                fe, fl = split(fe), split(fl)
                seq = []
                ie = il = 0
                tot = len(fe) + len(fl)
                for z in range(tot):
                    take_e = ie < len(fe) and (il >= len(fl) or ie * len(fl) <= il * len(fe))
                    if take_e:
                        seq.append(fe[ie]); ie += 1
                    else:
                        seq.append(fl[il]); il += 1
                bp = BP if cnt == 2 else min(BP, 1)
                pl = {}
                if BP == 1 and not G0:
                    gaps = list(range(1, nm - 1 - FINE_TAIL))
                    for idx, ins in enumerate(seq):
                        pl.setdefault(gaps[idx * len(gaps) // len(seq)], []).extend(ins)
                else:
                    ge = list(range(0, nm - 1 - FINE_TAIL))
                    gl = list(range(bp, nm - 1 - FINE_TAIL))
                    for idx, ins in enumerate(fe):
                        pl.setdefault(ge[idx * len(ge) // len(fe)], []).extend(ins)
                    for idx, ins in enumerate(fl):
                        pl.setdefault(gl[(2 * idx + 1) * len(gl) // (2 * len(fl))], []).extend(ins)
                a(f"s_waitcnt vmcnt({waits[gb]}) lgkmcnt(0)")
                for i, (f, k) in enumerate(mf):
                    mfma(a, f, f0 + k, breg(gb, k))
                    if i == bp:
                        a("s_barrier")
                    a.lines.extend(pl.get(i, []))
                continue
            a(f"s_waitcnt vmcnt({40 if AB_NOWAIT else waits[gb]}) lgkmcnt(0)")
            for i, (f, k) in enumerate(mf):
                mfma(a, f, f0 + k, breg(gb, k))
                if STAG:
                    if i == p1:
                        a(f"s_cbranch_vccnz L_b1_{gb}")
                        a("s_barrier")
                        a.label(f"L_b1_{gb}")
                    if i == p2:
                        a(f"s_cbranch_vccz L_b2_{gb}")
                        a("s_barrier")
                        a.label(f"L_b2_{gb}")
                elif i == p1 and not AB_NOBAR:
                    a("s_barrier")
                for it_ in place.get(i, []):
                    it_()
        a(f"s_add_u32 s{S_ITW}, s{S_ITW}, 2")
        stage_regs(a)
        if DIAGI:
            for i in range(3):
                a(f"s_cmp_eq_u32 s{S_IT}, {i}")
                a(f"s_cbranch_scc0 L_st{i}_{variant}")
                a(f"s_memtime s[{STAMPS[2+i]}:{STAMPS[2+i]+1}]")
                a.label(f"L_st{i}_{variant}")
        a(f"s_add_u32 s{S_IT}, s{S_IT}, 1")
        a(f"s_cmp_lt_u32 s{S_IT}, 4")
        a(f"s_cbranch_scc1 L_loop{variant}")


    if TWO:
        if TWO == 2:
            a(f"s_and_b32 s{S_T0}, s{S_WAVE}, 1")
            a(f"s_cmp_eq_u32 s{S_T0}, 1")
        else:
            a(f"s_cmp_ge_u32 s{S_WAVE}, 4")
        a("s_cbranch_scc1 L_loop1")
        emit_loop(0)
        a("s_branch L_epi")
        emit_loop(1)
        a.label("L_epi")
    else:
        emit_loop(0)

    INLOOP[0] = False
    a.c("epilogue")
    stamp(a, 3)
    stampe(a, 1)
    P = V_E
    Y = V_E + 16
    T = V_E + 32
    VS, VM2 = V_O, V_O + 1
    U0, U1, U2, U3 = V_O + 2, V_O + 3, V_O + 4, V_O + 5
    U4, U5 = V_O + 6, V_O + 7
    ST = V_O + 8
    UM = V_O + 40
    OA0, OA1 = V_O + 42, V_O + 43
    a("s_waitcnt lgkmcnt(0)")
    a(f"s_cmp_eq_u32 s{S_KH}, 0")
    a("s_cbranch_scc0 L_ex1")
    for f in range(4):
        a(f"ds_write_b128 v{V_T0}, {vr(V_ACC+16+4*f,4)} offset:{f*1024}")
    a("s_branch L_ex2")
    a.label("L_ex1")
    for f in range(4):
        a(f"ds_write_b128 v{V_T0}, {vr(V_ACC+4*f,4)} offset:{f*1024}")
    a("s_nop 1")
    for v in range(16):
        a(f"v_mov_b32 v{V_ACC+v}, v{V_ACC+16+v}")
    a.label("L_ex2")
    a(f"v_lshl_or_b32 v{V_GB}, v{V_LANE}, 16, v{V_GB}")
    a(f"v_mbcnt_lo_u32_b32 v{V_LANE}, -1, 0")
    a(f"v_mbcnt_hi_u32_b32 v{V_LANE}, -1, v{V_LANE}")
    a(f"v_lshlrev_b32 v{V_BIAS}, 16, v{V_BIAS}")
    a(f"v_and_b32 v{U0}, 15, v{V_LANE}")
    a(f"s_lshl_b32 s{S_T0}, s{S_NQ}, 6")
    a(f"s_add_u32 s{S_T0}, s{S_T0}, {L_YT}")
    a(f"v_lshl_add_u32 v{U1}, v{U0}, 2, s{S_T0}")
    a(f"v_lshl_add_u32 v{U1}, v{V_T2}, 8, v{U1}")
    a(f"s_lshl_b32 s{S_T0}, s{S_KH}, 9")
    a(f"s_lshl_b32 s{S_T1}, s{S_NQ}, 7")
    a(f"s_add_u32 s{S_T0}, s{S_T0}, s{S_T1}")
    a(f"v_lshl_add_u32 v{U2}, v{U0}, 3, s{S_T0}")
    a(f"v_cvt_f32_u32 v{U3}, s{S_CNT}")
    a(f"v_rcp_f32 v{U3}, v{U3}")
    for v in range(0, 16, 2):
        pk(a, "add", Y + v, V_ACC + v, V_BIAS, mods="op_sel_hi:[1,0]")
    a("s_waitcnt vmcnt(0) lgkmcnt(0)")
    a("s_barrier")
    for f in range(4):
        a(f"ds_read_b128 {vr(P+4*f,4)}, v{V_T1} offset:{f*1024}")
    for f in range(4):
        a(f"s_waitcnt lgkmcnt({3-f})")
        pk(a, "add", Y + 4 * f, Y + 4 * f, P + 4 * f)
        pk(a, "add", Y + 4 * f + 2, Y + 4 * f + 2, P + 4 * f + 2)
    for v in range(16):
        a(f"v_cndmask_b32 v{T+v}, 0, v{Y+v}, {sr(MASKS[v],2)}")
    for st in (8, 4, 2):
        for v in range(0, st, 2):
            pk(a, "add", T + v, T + v, T + v + st)
    a(f"v_add_f32 v{VS}, v{T}, v{T+1}")
    cross4_sum(a, VS, U4, U5)
    a(f"v_mul_f32 v{UM}, v{VS}, v{U3}")
    for v in range(0, 16, 2):
        pk(a, "add", T + v, Y + v, UM, mods="op_sel_hi:[1,0] neg_lo:[0,1] neg_hi:[0,1]")
    for v in range(16):
        a(f"v_cndmask_b32 v{T+v}, 0, v{T+v}, {sr(MASKS[v],2)}")
    for v in range(0, 8, 2):
        pk(a, "mul", T + v, T + v, T + v)
    for v in range(0, 8, 2):
        pk(a, "fma", T + v, T + 8 + v, T + 8 + v, T + v)
    for st in (4, 2):
        for v in range(0, st, 2):
            pk(a, "add", T + v, T + v, T + v + st)
    a(f"v_add_f32 v{VM2}, v{T}, v{T+1}")
    cross4_sum(a, VM2, U4, U5)
    a(f"ds_write_b64 v{U2}, {vr(VS,2)} offset:{L_ST}")
    for v in range(16):
        f1, r = v >> 2, v & 3
        a(f"ds_write_b32 v{U1}, v{Y+v} offset:{(8*r+f1)*256}")
    a(f"v_lshrrev_b32 v{U0}, 3, v{V_LANE}")
    a(f"v_and_b32 v{U1}, 7, v{V_LANE}")
    a(f"s_lshl_b32 s{S_T0}, s{S_WAVE}, 12")
    a(f"s_add_u32 s{S_T0}, s{S_T0}, {L_YT}")
    a(f"v_lshl_add_u32 v{U2}, v{U0}, 8, s{S_T0}")
    a(f"v_lshl_add_u32 v{U2}, v{U1}, 5, v{U2}")
    a("s_waitcnt lgkmcnt(0)")
    a("s_barrier")
    Z = V_E
    a(f"s_cmp_lg_u32 s{S_WAVE}, 0")
    a("s_cbranch_scc1 L_notw0")
    stampe(a, 2)
    a(f"v_lshlrev_b32 v{U3}, 3, v{V_LANE}")
    a(f"ds_read_b64 {vr(T,2)}, v{U3} offset:{L_ST}")
    a(f"ds_read_b64 {vr(T+2,2)}, v{U3} offset:{L_ST+512}")
    a(f"s_lshl_b32 s{S_T0}, s{S_GRP}, 2")
    a(f"v_mov_b32 v{U5}, s{S_T0}")
    a(f"buffer_load_dword v{T+12}, v{U5}, {sr(SRD_DBG,4)}, 0 offen offset:{CNT_OFF} sc1")
    a(f"s_cmp_eq_u32 s{S_MT}, 15")
    a(f"s_cselect_b32 s{S_T0}, 37, 64")
    a(f"s_cselect_b32 s{S_T1}, 36, 64")
    a(f"v_cvt_f32_u32 v{T+4}, s{S_T0}")
    a(f"v_cvt_f32_u32 v{T+5}, s{S_T1}")
    a(f"v_cvt_f32_u32 v{T+6}, s{S_NVAL}")
    a(f"v_rcp_f32 v{T+7}, v{T+4}")
    a(f"v_rcp_f32 v{T+8}, v{T+5}")
    a(f"v_rcp_f32 v{T+9}, v{T+6}")
    a(f"s_lshl_b32 s{S_T0}, s{S_GRP}, 13")
    a(f"s_lshl_b32 s{S_T1}, s{S_MT}, 9")
    a(f"s_add_u32 s{S_T1}, s{S_T1}, s{S_T0}")
    a(f"v_add_u32 v{U4}, s{S_T0}, v{U3}")
    a(f"v_add_u32 v{U3}, s{S_T1}, v{U3}")
    a("s_waitcnt lgkmcnt(0)")
    a(f"v_add_f32 v{VS}, v{T}, v{T+2}")
    a(f"v_mul_f32 v{T+9}, v{VS}, v{T+9}")
    a(f"v_add_f32 v{VM2}, v{T+1}, v{T+3}")
    a(f"v_fma_f32 v{T+10}, v{T}, v{T+7}, -v{T+9}")
    a(f"v_fma_f32 v{T+11}, v{T+2}, v{T+8}, -v{T+9}")
    a(f"v_mul_f32 v{T+10}, v{T+10}, v{T+10}")
    a(f"v_mul_f32 v{T+11}, v{T+11}, v{T+11}")
    a(f"v_fmac_f32 v{VM2}, v{T+10}, v{T+4}")
    a(f"v_fmac_f32 v{VM2}, v{T+11}, v{T+5}")
    a(f"v_max_f32 v{VM2}, 0, v{VM2}")
    a(f"v_and_b32 v{VM2}, 0x7fffffff, v{VM2}")
    a(f"buffer_store_dwordx2 {vr(VS,2)}, v{U3}, {sr(SRD_WS,4)}, 0 offen sc1")
    a(f"s_mov_b32 s{S_T2}, 0")
    a(f"s_movk_i32 s{S_T3}, 4096")
    a("s_waitcnt vmcnt(1)")
    a.label("L_pollA")
    a(f"v_readfirstlane_b32 s{S_T1}, v{T+12}")
    a(f"s_add_u32 s{S_T2}, s{S_T2}, 1")
    a(f"s_cmp_ge_u32 s{S_T1}, 16")
    a("s_cbranch_scc1 L_pollB")
    a(f"buffer_load_dword v{T+12}, v{U5}, {sr(SRD_DBG,4)}, 0 offen offset:{CNT_OFF} sc1")
    a("s_waitcnt vmcnt(0)")
    a(f"s_cmp_lt_u32 s{S_T2}, 0x400000")
    a("s_cbranch_scc1 L_pollA")
    a.label("L_pollB")
    for i in range(16):
        so = "0" if i < 8 else f"s{S_T3}"
        a(f"buffer_load_dwordx2 {vr(ST+2*i,2)}, v{U4}, {sr(SRD_WS,4)}, {so} offen offset:{(i%8)*512} sc1")
    a("s_waitcnt vmcnt(0)")
    a(f"v_or3_b32 v{T}, v{ST+1}, v{ST+3}, v{ST+5}")
    a(f"v_or3_b32 v{T+1}, v{ST+7}, v{ST+9}, v{ST+11}")
    a(f"v_or3_b32 v{T+2}, v{ST+13}, v{ST+15}, v{ST+17}")
    a(f"v_or3_b32 v{T+3}, v{ST+19}, v{ST+21}, v{ST+23}")
    a(f"v_or3_b32 v{T+4}, v{ST+25}, v{ST+27}, v{ST+29}")
    a(f"v_or3_b32 v{T}, v{T}, v{T+1}, v{ST+31}")
    a(f"v_or3_b32 v{T+2}, v{T+2}, v{T+3}, v{T+4}")
    a(f"v_or_b32 v{T}, v{T}, v{T+2}")
    a(f"v_cmp_gt_i32 vcc, 0, v{T}")
    a(f"s_add_u32 s{S_T2}, s{S_T2}, 1")
    a("s_nop 3")
    a("s_cbranch_vccz L_got")
    a(f"s_cmp_lt_u32 s{S_T2}, 0x400000")
    a("s_cbranch_scc1 L_pollB")
    a.label("L_got")
    stamp(a, 4)
    stampe(a, 3)
    for i in range(8):
        pk(a, "add", T + 2 * i, ST + 2 * i, ST + 2 * i + 16)
    for st in (4, 2, 1):
        for v in range(st):
            pk(a, "add", T + 2 * v, T + 2 * v, T + 2 * (v + st))
    a(f"v_mul_f32 v{T}, {f2u(1.0/1993.0):#x}, v{T}")
    a(f"s_mov_b32 s{S_T0}, {f2u(1.0/128.0):#x}")
    a(f"s_mov_b32 s{S_T1}, {f2u(1.0/73.0):#x}")
    for i in range(16):
        a(f"v_fma_f32 v{ST+2*i}, v{ST+2*i}, s{S_T0 if i < 15 else S_T1}, -v{T}")
    for i in range(4):
        a(f"v_mul_f32 v{T+2+i}, v{ST+2*i}, v{ST+2*i}")
    for i in range(4, 15):
        a(f"v_fmac_f32 v{T+2+(i&3)}, v{ST+2*i}, v{ST+2*i}")
    a(f"v_mul_f32 v{ST+30}, v{ST+30}, v{ST+30}")
    a(f"v_add_f32 v{T+2}, v{T+2}, v{T+3}")
    a(f"v_add_f32 v{T+4}, v{T+4}, v{T+5}")
    a(f"v_fmac_f32 v{T+1}, 0x42920000, v{ST+30}")
    a(f"v_add_f32 v{T+2}, v{T+2}, v{T+4}")
    a(f"v_fmac_f32 v{T+1}, 0x43000000, v{T+2}")
    a(f"v_mov_b32 v{T+2}, {f2u(1e-5):#x}")
    a(f"v_fmac_f32 v{T+2}, {f2u(1.0/1993.0):#x}, v{T+1}")
    a(f"v_rsq_f32 v{T+2}, v{T+2}")
    a(f"v_lshlrev_b32 v{T+3}, 16, v{V_GB}")
    a(f"v_and_b32 v{T+4}, 0xffff0000, v{V_GB}")
    a(f"v_lshlrev_b32 v{U3}, 2, v{V_LANE}")
    a(f"v_mul_f32 v{T+2}, v{T+2}, v{T+3}")
    a(f"v_fma_f32 v{T+3}, -v{T}, v{T+2}, v{T+4}")
    a(f"ds_write_b32 v{U3}, v{T+2} offset:{L_SC}")
    a(f"ds_write_b32 v{U3}, v{T+3} offset:{L_SH}")
    a.label("L_notw0")
    for i2 in range(2):
        for half in range(2):
            a(f"ds_read_b128 {vr(Z+8*i2+4*half,4)}, v{U2} offset:{i2*2048+half*16}")
    a(f"s_lshl_b32 s{S_T0}, s{S_WAVE}, 4")
    a(f"s_lshl_b32 s{S_T1}, s{S_MT}, 7")
    a(f"s_add_u32 s{S_T0}, s{S_T0}, s{S_T1}")
    a(f"v_add_u32 v{U0}, s{S_T0}, v{U0}")
    a(f"v_add_u32 v{U3}, 8, v{U0}")
    a(f"s_mul_i32 s{S_T0}, s{S_B}, 2040832")
    a(f"s_lshl_b32 s{S_T1}, s{S_NT}, 7")
    a(f"s_add_u32 s{S_T0}, s{S_T0}, s{S_T1}")
    a(f"v_lshl_add_u32 v{U4}, v{U1}, 4, s{S_T0}")
    a(f"v_lshl_add_u32 v{OA0}, v{U0}, 10, v{U4}")
    a(f"v_lshl_add_u32 v{OA1}, v{U3}, 10, v{U4}")
    a(f"v_mov_b32 v{U4}, 0x7f000000")
    a(f"s_movk_i32 s{S_T0}, 1993")
    a(f"v_cmp_gt_u32 vcc, s{S_T0}, v{U0}")
    a(f"v_cmp_gt_u32 {sr(MASKS[0],2)}, s{S_T0}, v{U3}")
    a(f"v_lshlrev_b32 v{U1}, 5, v{U1}")
    a(f"v_cndmask_b32 v{OA0}, v{U4}, v{OA0}, vcc")
    a(f"v_cndmask_b32 v{OA1}, v{U4}, v{OA1}, {sr(MASKS[0],2)}")
    k0 = math.sqrt(2.0 / math.pi)
    c0 = -2.0 * k0 * math.log2(math.e)
    c1 = c0 * 0.044715
    C0, C1, ONE = V_O + 8, V_O + 10, V_O + 12
    a(f"v_mov_b32 v{C0}, {f2u(c0):#x}")
    a(f"v_mov_b32 v{C1}, {f2u(c1):#x}")
    a(f"v_mov_b32 v{ONE}, 1.0")
    a("s_waitcnt lgkmcnt(0)")
    a("s_barrier")
    SC, SH, E = V_E + 16, V_E + 24, V_E + 32
    a(f"ds_read_b128 {vr(SC,4)}, v{U1} offset:{L_SC}")
    a(f"ds_read_b128 {vr(SH,4)}, v{U1} offset:{L_SH}")
    a(f"ds_read_b128 {vr(SC+4,4)}, v{U1} offset:{L_SC+16}")
    a(f"ds_read_b128 {vr(SH+4,4)}, v{U1} offset:{L_SH+16}")
    a("s_waitcnt lgkmcnt(0)")
    for v in range(0, 16, 2):
        pk(a, "fma", Z + v, Z + v, SC + (v & 7), SH + (v & 7))
    for v in range(0, 16, 2):
        pk(a, "mul", E + v, Z + v, Z + v)
    for v in range(0, 16, 2):
        pk(a, "fma", E + v, E + v, C1, C0, mods="op_sel_hi:[1,0,0]")
    for v in range(0, 16, 2):
        pk(a, "mul", E + v, E + v, Z + v)
    for v in range(16):
        a(f"v_exp_f32 v{E+v}, v{E+v}")
    for v in range(0, 16, 2):
        pk(a, "add", E + v, E + v, ONE, mods="op_sel_hi:[1,0]")
    for v in range(16):
        a(f"v_rcp_f32 v{E+v}, v{E+v}")
    for v in range(0, 16, 2):
        pk(a, "mul", Z + v, Z + v, E + v)
    for v in range(8):
        a(f"v_cvt_pk_bf16_f32 v{E+v}, v{Z+2*v}, v{Z+2*v+1}")
    a(f"buffer_store_dwordx4 {vr(E,4)}, v{OA0}, {sr(SRD_OUT,4)}, 0 offen {OFLAG}")
    a(f"buffer_store_dwordx4 {vr(E+4,4)}, v{OA1}, {sr(SRD_OUT,4)}, 0 offen {OFLAG}")
    if DIAG:
        a(f"s_cmp_lg_u32 s{S_WAVE}, 0")
        a("s_cbranch_scc1 L_end")
        a("s_waitcnt vmcnt(0)")
        stampe(a, 4)
        stamp(a, 5, True)
        a("s_waitcnt lgkmcnt(0)")
        if DIAGH:
            a(f"v_mov_b32 v{V_T0}, 0")
            a(f"v_cmp_eq_u32 vcc, 0, v{V_LANE}")
            a("s_nop 1")
            a("s_and_saveexec_b64 s[74:75], vcc")
            a(f"v_mov_b32 v{V_T1}, s{STAMPS[5]}")
            a(f"buffer_atomic_umax v{V_T1}, v{V_T0}, {sr(SRD_DBG,4)}, 0 offen sc1")
            a(f"s_not_b32 s{S_T0}, s{STAMPS[0]}")
            a(f"v_mov_b32 v{V_T1}, s{S_T0}")
            a(f"buffer_atomic_umax v{V_T1}, v{V_T0}, {sr(SRD_DBG,4)}, 0 offen offset:4 sc1")
            a(f"v_mov_b32 v{V_T1}, s{STAMPS[0]}")
            a(f"buffer_atomic_umax v{V_T1}, v{V_T0}, {sr(SRD_DBG,4)}, 0 offen offset:8 sc1")
            for i in range(3):
                a(f"s_sub_u32 s{S_T0}, s{STAMPS[i+2]}, s{STAMPS[i+1]}")
                a(f"v_mov_b32 v{V_T1}, s{S_T0}")
                a(f"buffer_atomic_umax v{V_T1}, v{V_T0}, {sr(SRD_DBG,4)}, 0 offen offset:{12+4*i} sc1")
                a(f"buffer_atomic_add v{V_T1}, v{V_T0}, {sr(SRD_DBG,4)}, 0 offen offset:{24+4*i} sc1")
            a("s_mov_b64 exec, s[74:75]")
        a(f"s_lshl_b32 s{S_T0}, s2, 6")
        a(f"s_add_u32 s{S_T0}, s{S_T0}, 0x1000000")
        a(f"v_mov_b32 v{V_T0}, s{S_T0}")
        for i in range(6):
            a(f"v_mov_b32 v{V_T1}, s{STAMPS[i]}")
            a(f"buffer_store_dword v{V_T1}, v{V_T0}, {sr(SRD_WS,4)}, 0 offen offset:{4*i}")
    a.label("L_end")
    a("s_endpgm")

    a.label("L_helper")
    INLOOP[0] = False
    hq = VQ()
    V_WOFF_ODD = 12
    a(f"v_xor_b32 v{V_WOFF_ODD}, 64, v{V_WOFF}")

    def h_w(t):
        slot, sig = t % NSLOT, t % 15
        for w in range(8):
            a(f"s_mov_b32 m0, {WRING + slot*8192 + w*1024}")
            a(f"s_add_u32 s{S_T0}, s{S_SW}, {tap_of(sig)*524288 + w*8192}")
            a(f"buffer_load_dwordx4 v{V_WOFF if w % 2 == 0 else V_WOFF_ODD}, {sr(SRD_W,4)}, s{S_T0} offen lds")
            hq.issue(('W', t, w))

    def h_x(d0, d1):
        for d in range(d0, d1):
            a(f"s_mov_b32 m0, {XBUF + d*XBLK}")
            a(f"s_add_u32 s{S_T0}, s{S_SX+1}, {d*8192}")
            a(f"buffer_load_dwordx4 v{V_XOFF}, {sr(SRD_X,4)}, s{S_T0} offen lds")
            hq.issue(('X', d))

    def h_bar(u):
        f0, cnt = GROUPS[u + 2]
        need = [('W', f0 + k, w) for k in range(cnt) for w in range(8)]
        if u == GSW - 1:
            need += [('X', d) for d in range(34)]
        n = hq.need(need)
        if n is not None:
            a(f"s_waitcnt vmcnt({n})")
            hq.waited = max(hq.waited, len(hq.q) - 1 - n)
        if u < 0 or not AB_NOBAR:
            a("s_barrier")

    todo = [('w', t) for t in range(NPRE, NSLOT)] + [('x', 0), ('x', 9), ('x', 18), ('x', 26)]
    for _ in range(min(2, HPRE)):
        k, v = todo.pop(0)
        h_w(v)
    make_srd(a, SRD_WS, S_WS, WS_BYTES)
    make_srd(a, SRD_DBG, S_DBG, 256)
    make_srd(a, SRD_P, S_X, X_BYTES)
    a(f"s_lshl_b32 s{S_GRP}, s{S_B}, 3")
    a(f"s_add_u32 s{S_GRP}, s{S_GRP}, s{S_NT}")
    a(f"s_lshl_b32 s{S_T0}, s{S_GRP}, 13")
    a(f"s_lshl_b32 s{S_T1}, s{S_MT}, 9")
    a(f"s_add_u32 s{S_T1}, s{S_T1}, s{S_T0}")
    a(f"v_lshl_add_u32 v{V_T0}, v{V_LANE}, 3, s{S_T1}")
    a("v_mov_b32 v14, 0")
    a("v_mov_b32 v15, -1.0")
    a(f"buffer_store_dwordx2 v[14:15], v{V_T0}, {sr(SRD_WS,4)}, 0 offen sc1")
    hq.issue('clr')
    a(f"v_mov_b32 v{V_T2}, 0x7f000000")
    a(f"v_lshlrev_b32 v{V_T1}, 10, v{V_LANE}")
    a(f"v_add_u32 v{V_T1}, 384, v{V_T1}")
    a(f"s_mul_i32 s{S_T2}, s2, {32*1024}")
    a(f"s_mul_i32 s{S_T3}, s2, {30*1024}")
    a(f"v_cmp_gt_u32 vcc, 32, v{V_LANE}")
    a(f"v_cmp_gt_u32 s[72:73], 30, v{V_LANE}")
    a(f"s_lshl_b32 s{S_T1}, s{S_GRP}, 2")
    a(f"v_mov_b32 v18, s{S_T1}")
    a(f"v_cndmask_b32 v16, v{V_T2}, v{V_T1}, vcc")
    a(f"v_cndmask_b32 v17, v{V_T2}, v{V_T1}, s[72:73]")
    a("v_mov_b32 v19, 1")
    a(f"buffer_load_dword v20, v17, {sr(SRD_W,4)}, s{S_T3} offen")
    hq.issue('t0')
    a(f"buffer_load_dword v21, v16, {sr(SRD_P,4)}, s{S_T2} offen")
    hq.issue('t1')
    if L2PF:
        a(f"s_mul_i32 s{S_T1}, s{S_MT}, 60")
        a(f"v_add_u32 v22, s{S_T1}, v{V_LANE}")
        a("v_lshrrev_b32 v23, 6, v22")
        a("v_and_b32 v22, 63, v22")
        a("v_lshlrev_b32 v23, 19, v23")
        a("v_lshl_add_u32 v22, v22, 10, v23")
        a(f"s_lshl_b32 s{S_T1}, s{S_NT}, 7")
        a(f"v_add_u32 v22, s{S_T1}, v22")
        a(f"v_cmp_gt_u32 vcc, 60, v{V_LANE}")
        a("s_nop 1")
        a(f"v_cndmask_b32 v22, v{V_T2}, v22, vcc")
        a(f"buffer_load_dword v24, v22, {sr(SRD_W,4)}, s{S_SW+1} offen {PFFLAG}")
        hq.issue('p1')
        a(f"buffer_load_dword v25, v22, {sr(SRD_W,4)}, s{S_SW+2} offen {PFFLAG}")
        hq.issue('p2')
    def xlin():
        a(f"v_lshlrev_b32 v26, 7, v{V_LANE}")
        a(f"v_cmp_gt_u32 vcc, 58, v{V_LANE}")
        a(f"s_mul_i32 s{S_T2}, s2, {250*128}")
        a(f"v_cndmask_b32 v27, v{V_T2}, v26, vcc")
        for i in range(4):
            a(f"buffer_load_dword v{28+i}, v{26 if i < 3 else 27}, {sr(SRD_P,4)}, s{S_T2} offen")
            hq.issue(('xl', i))
            a(f"s_add_u32 s{S_T2}, s{S_T2}, 8192")

    def wlin():
        a(f"v_lshlrev_b32 v26, 7, v{V_LANE}")
        a(f"v_cmp_gt_u32 vcc, 48, v{V_LANE}")
        a(f"s_mul_i32 s{S_T2}, s2, {240*128}")
        a(f"v_cndmask_b32 v27, v{V_T2}, v26, vcc")
        for i in range(4):
            a(f"buffer_load_dword v{32+i}, v{26 if i < 3 else 27}, {sr(SRD_W,4)}, s{S_T2} offen")
            hq.issue(('wl', i))
            a(f"s_add_u32 s{S_T2}, s{S_T2}, 8192")

    if XLIN == 1:
        xlin()
    for _ in range(HPRE - 2):
        k, v = todo.pop(0)
        h_w(v)
    h_bar(-1)
    if XLIN == 2:
        xlin()
    u = 0
    xend = {0: 9, 9: 18, 18: 26, 26: 34}
    while todo:
        for _ in range(HPER):
            if todo:
                k, v = todo.pop(0)
                if k == 'w':
                    h_w(v)
                else:
                    h_x(v, xend[v])
        h_bar(u)
        u += 1
    assert hq.waited > hq.q.index('clr')
    if XLIN == 3:
        xlin()
    if WLIN:
        wlin()
    a(f"v_cmp_eq_u32 vcc, 0, v{V_LANE}")
    a("s_nop 1")
    a("s_and_saveexec_b64 s[74:75], vcc")
    a(f"buffer_atomic_add v19, v18, {sr(SRD_DBG,4)}, 0 offen offset:{CNT_OFF} sc1")
    hq.issue('atom')
    a("s_mov_b64 exec, s[74:75]")
    while u <= GSW:
        h_bar(u)
        u += 1
    if L2PF:
        while u < 8:
            a("s_barrier")
            u += 1
        a(f"s_mov_b32 s{S_T0}, 3")
        a.label("L_hloop")
        a(f"s_add_u32 s{S_T1}, s{S_T0}, s{S_K}")
        a(f"s_and_b32 s{S_T1}, s{S_T1}, 7")
        a(f"s_lshl_b32 s{S_T1}, s{S_T1}, 16")
        a(f"buffer_load_dword v24, v22, {sr(SRD_W,4)}, s{S_T1} offen {PFFLAG}")
        for _ in range(8):
            a("s_barrier")
        a(f"s_add_u32 s{S_T0}, s{S_T0}, 1")
        a(f"s_cmp_lt_u32 s{S_T0}, 8")
        a("s_cbranch_scc1 L_hloop")
    else:
        a(f"s_mov_b32 s{S_T0}, 0")
        a.label("L_hloop")
        if not AB_NOBAR:
            a("s_barrier")
        a(f"s_add_u32 s{S_T0}, s{S_T0}, 1")
        a(f"s_cmp_lt_u32 s{S_T0}, 16")
        a("s_cbranch_scc1 L_hloop")
    a("s_waitcnt vmcnt(0)")
    a("s_endpgm")


def kd(name, nvgpr):
    acc = (nvgpr + 3) // 4 * 4
    return f""".p2align 6
.amdhsa_kernel {name}
  .amdhsa_next_free_vgpr {nvgpr}
  .amdhsa_next_free_sgpr 102
  .amdhsa_accum_offset {acc}
  .amdhsa_group_segment_fixed_size 0
  .amdhsa_kernarg_size 64
  .amdhsa_user_sgpr_count 2
  .amdhsa_user_sgpr_kernarg_segment_ptr 1
  .amdhsa_system_sgpr_workgroup_id_x 1
  .amdhsa_float_denorm_mode_32 3
.end_amdhsa_kernel
"""


def main():
    args = [x for x in ARGS if not x.startswith("-")]
    out = args[0] if args else f"cdna_kernels/{NAME}.s"
    hdr = f"""; conv stem (HuBERT): conv1d(k=15,s=2) as implicit GEMM + per-channel norm over time + GELU, one fused kernel
; @launch grid=(256,1,1) block=(576,1,1) lds={LDS1}
.amdgcn_target "amdgcn-amd-amdhsa--gfx950"
.text
"""
    a = Asm()
    gen_kernel(a)
    txt = hdr + a.text() + '.section .rodata,"a"\n' + kd(NAME + "_kernel", NVGPR)
    open(out, "w").write(txt)


if __name__ == "__main__":
    main()
```

```python
import sys
import struct
import math

NAME = "standalone__self_sup_conv_stem_hubert__speech"
ARGS = sys.argv[1:]
DIAG = "--diag" in ARGS
DIAGE = "--diage" in ARGS
DIAGI = "--diagi" in ARGS
DIAGP = "--diagp" in ARGS


def stampp(a, i):
    if DIAGP:
        a(f"s_memtime s[{STAMPS[i]}:{STAMPS[i]+1}]")

DIAGW = "--diagw" in ARGS
DIAGH = "--diagh" in ARGS
if DIAGH:
    DIAG = True
CNT_OFF = 64 if DIAGH else 0
OFLAG = "sc1"
for _a in ARGS:
    if _a.startswith("--oflag="):
        OFLAG = _a[8:].replace("+", " ")
STAG = "--stag" in ARGS
AB_NODMA = "--ab_nodma" in ARGS
AB_NOREAD = "--ab_noread" in ARGS
AB_NOBAR = "--ab_nobar" in ARGS
AB_ZDMA = "--ab_zdma" in ARGS
AB_NOA = "--ab_noa" in ARGS
import random
GSEED = {}
for _a in ARGS:
    if _a.startswith("--gseed="):
        for _p in _a[8:].split(","):
            _g, _s = _p.split(":")
            GSEED[int(_g)] = int(_s)
BP = 1
G0 = "--g0" in ARGS
for _a in ARGS:
    if _a.startswith("--bp="):
        BP = int(_a[5:])
HPRE = 3
HPER = 2
for _a in ARGS:
    if _a.startswith("--hpre="):
        HPRE = int(_a[7:])
    if _a.startswith("--hper="):
        HPER = int(_a[7:])
XLIN = 0
WLIN = "--wlin" in ARGS
for _a in ARGS:
    if _a.startswith("--xlin="):
        XLIN = int(_a[7:])
ROTV = "k"
for _a in ARGS:
    if _a.startswith("--rotv="):
        ROTV = _a[7:]
L2PF = "--l2pf" in ARGS
PFFLAG = "sc1" if "--pfsc1" in ARGS else ""
FINE = "--fine" in ARGS
FINE_TAIL = 0
for _a in ARGS:
    if _a.startswith("--ftail="):
        FINE_TAIL = int(_a[8:])
FRONT = 0
for _a in ARGS:
    if _a.startswith("--front="):
        FRONT = int(_a[8:])
TWO = 2 if "--two2" in ARGS else (1 if "--two" in ARGS else 0)
DSPLIT = 2 if "--dsplit2" in ARGS else (1 if "--dsplit" in ARGS else 0)
AB_NOWAIT = "--ab_nowait" in ARGS
INLOOP = [False]
P2 = 9
for _a in ARGS:
    if _a.startswith("--p2="):
        P2 = int(_a[5:])
NPRE = 4
for _a in ARGS:
    if _a.startswith("--npre="):
        NPRE = int(_a[7:])

X_BYTES = 2 * 4000 * 512 * 2
W_BYTES = 15 * 512 * 512 * 2
OUT_BYTES = 2 * 1993 * 512 * 2
WS_BYTES = 268435456
XBLK = 1040
XBUF = 34 * XBLK
WRING = 2 * XBUF
NSLOT = 10
LDS1 = WRING + NSLOT * 8192
L_ST, L_SC, L_SH, L_EX, L_YT = 0, 1024, 1280, 2048, XBUF


def f2u(x):
    return struct.unpack("<I", struct.pack("<f", x))[0]


class Asm:
    def __init__(self):
        self.lines = []

    def __call__(self, s):
        if INLOOP[0] and "--ab_salu" in ARGS and s.startswith("buffer_load_dwordx4"):
            return
        if INLOOP[0] and "--ab_nosalu" in ARGS and (s.startswith("s_add_u32 m0") or s.startswith("s_add_u32 s57") or s.startswith("s_add_u32 s58") or s.startswith("s_mov_b32 s58")):
            return
        if INLOOP[0] and "--ab_dw" in ARGS and s.startswith("buffer_load_dwordx4"):
            s = s.replace("buffer_load_dwordx4", "buffer_load_dword")
        self.lines.append("    " + s)

    def label(self, l):
        self.lines.append(l + ":")

    def c(self, s):
        self.lines.append("    ; " + s)

    def text(self):
        return "\n".join(self.lines) + "\n"


def vr(a, n=1):
    return f"v{a}" if n == 1 else f"v[{a}:{a+n-1}]"


def sr(a, n=1):
    return f"s{a}" if n == 1 else f"s[{a}:{a+n-1}]"


V_GB = 0
V_LANE, V_T0, V_T1, V_T2 = 1, 2, 3, 4
V_BADDR2, V_AADDR, V_BADDR, V_WOFF, V_XOFF, V_BIAS, V_XOFF5 = 5, 6, 7, 8, 9, 10, 11
V_E = 12
V_O = 72
V_B = 120
V_ACC = 136
NVGPR = 168

S_X, S_W, S_BI, S_GA = 4, 6, 8, 10
S_BE, S_OUT, S_DBG, S_WS = 12, 14, 16, 18
SRD_X, SRD_W, SRD_WS, SRD_P = 20, 24, 28, 32
SRD_OUT, SRD_DBG = 36, 40
S_K, S_Q, S_B, S_NT, S_MT = 44, 45, 46, 47, 48
S_WAVE, S_KH, S_NQ, S_WM0, S_XM0, S_XM05 = 49, 50, 51, 52, 53, 54
S_ITW, S_IT, S_T0, S_T1, S_T2, S_T3 = 55, 56, 57, 58, 59, 60
S_SW = 61
S_SX = 65
S_NVAL, S_CNT, S_GRP = 69, 70, 71
MASKS = list(range(4, 20, 2)) + list(range(72, 88, 2))
S_WV = 88
STAMPS = [90, 92, 94, 96, 98, 100]


def stampe(a, i):
    if DIAGE:
        a(f"s_memtime s[{STAMPS[i]}:{STAMPS[i]+1}]")


def stamp(a, i, rt=False):
    if DIAGP and not rt:
        if i == 1:
            a(f"s_memtime s[{STAMPS[1]}:{STAMPS[1]+1}]")
        return
    if DIAGI and not rt:
        if i == 2:
            a(f"s_memtime s[{STAMPS[1]}:{STAMPS[1]+1}]")
        return
    if DIAGW and not rt:
        if i == 2:
            a(f"s_memtime s[{STAMPS[1]}:{STAMPS[1]+1}]")
            a(f"s_memrealtime s[{STAMPS[2]}:{STAMPS[2]+1}]")
        if i == 3:
            a(f"s_memtime s[{STAMPS[3]}:{STAMPS[3]+1}]")
            a(f"s_memrealtime s[{STAMPS[4]}:{STAMPS[4]+1}]")
        return
    if DIAG and (rt or not DIAGE):
        a(f"s_mem{'real' if rt else ''}time s[{STAMPS[i]}:{STAMPS[i]+1}]")


def frag(par, g):
    if par == 0 or g < 2:
        return V_E + 4 * g
    return V_O + 4 * (g - 2)


def tap_of(sig):
    return 2 * sig if sig < 8 else 2 * (sig - 8) + 1


def make_srd(a, srd, base, nbytes):
    a(f"s_mov_b32 s{srd}, s{base}")
    a(f"s_and_b32 s{srd+1}, s{base+1}, 0xffff")
    a(f"s_mov_b32 s{srd+2}, {nbytes}")
    a(f"s_mov_b32 s{srd+3}, 0x00020000")


class VQ:
    def __init__(self):
        self.q = []
        self.waited = -1

    def issue(self, tag):
        self.q.append(tag)

    def need(self, tags):
        idx = [self.q.index(t) for t in tags if t in self.q]
        if not idx:
            return None
        return len(self.q) - 1 - max(idx)


GROUPS = [(0, 2), (2, 2), (4, 2), (6, 2), (8, 2), (10, 2), (12, 2), (14, 1)]
GSW = 5
A_SCHED = {0: [(0, 9), (0, 10), (0, 11), (0, 12)],
           1: [(0, 13), (0, 14), (1, 2), (1, 3)],
           2: [(1, 0), (1, 1), (1, 4), (1, 5)],
           3: [(1, 6), (1, 7), (1, 8), (1, 9)],
           4: [(1, 10), (1, 11), (1, 12), (1, 13)],
           5: [(0, 0), (0, 1), (0, 2), (0, 3)],
           6: [(0, 4), (0, 5), (0, 6), (0, 7)],
           7: [(0, 8)]}
X_SCHED = {5: [0, 1], 6: [2, 3], 7: [4]}
if "--xs1" in ARGS:
    X_SCHED = {5: [0], 6: [1], 7: [2], 0: [3], 1: [4]}
if "--xs2" in ARGS:
    X_SCHED = {5: [0, 1], 6: [2], 0: [3], 1: [4]}
if "--xs3" in ARGS:
    X_SCHED = {5: [0], 6: [1, 2], 0: [3], 1: [4]}


def xdelta(gi):
    return 2 if gi >= GSW else 1


def breg(gi, k):
    return V_B + 8 * (gi & 1) + 4 * k


def stage_regs(a):
    for rel in range(4):
        a(f"s_add_u32 s{S_T0}, s{S_ITW}, {rel}")
        a(f"s_and_b32 s{S_T0}, s{S_T0}, 7")
        a(f"s_lshl_b32 s{S_SW+rel}, s{S_T0}, 16")
        a(f"s_lshl_b32 s{S_SX+rel}, s{S_T0}, 7")


def a_read(a, par, g, buf):
    if INLOOP[0] and (AB_NOREAD or AB_NOA):
        return
    e = 2 * g + par
    off = buf * XBUF + (e >> 3) * XBLK + (e & 7) * 128
    a(f"ds_read_b128 {vr(frag(par, g), 4)}, v{V_AADDR} offset:{off}")


def b_read(a, t, b):
    if INLOOP[0] and AB_NOREAD:
        return
    slot = t % NSLOT
    va, sl = (V_BADDR, slot) if slot < 5 else (V_BADDR2, slot - 5)
    a(f"ds_read_b64_tr_b16 {vr(b, 2)}, v{va} offset:{sl*8192}")
    a(f"ds_read_b64_tr_b16 {vr(b+2, 2)}, v{va} offset:{sl*8192+512}")


def w_dma(a, trel):
    if INLOOP[0] and AB_NODMA:
        return
    slot = trel % NSLOT
    srel, sig = trel // 15, trel % 15
    a(f"s_add_u32 m0, s{S_WM0}, {slot*8192}")
    a(f"s_add_u32 s{S_T0}, s{S_SW+srel}, {tap_of(sig) * 524288}")
    a(f"buffer_load_dwordx4 v{V_WOFF}, {sr(SRD_W,4)}, s{S_T0} offen lds")


def x_dma(a, srel, j):
    if INLOOP[0] and AB_NODMA:
        return
    buf = srel & 1
    if j < 4:
        a(f"s_add_u32 m0, s{S_XM0}, {buf*XBUF + j*8*XBLK}")
        a(f"s_add_u32 s{S_T1}, s{S_SX+srel}, {j*65536}")
        a(f"buffer_load_dwordx4 v{V_XOFF}, {sr(SRD_X,4)}, s{S_T1} offen lds")
    else:
        a(f"s_add_u32 m0, s{S_XM05}, {buf*XBUF}")
        a(f"s_mov_b32 s{S_T1}, s{S_SX+srel}")
        a(f"buffer_load_dwordx4 v{V_XOFF5}, {sr(SRD_X,4)}, s{S_T1} offen lds")


def mfma(a, f, sig, b):
    acc = V_ACC + 4 * f
    par, j = (0, sig) if sig < 8 else (1, sig - 8)
    g = j + f
    a(f"v_mfma_f32_16x16x32_bf16 {vr(acc,4)}, {vr(frag(par,g),4)}, {vr(b,4)}, {vr(acc,4)}")


def cross4_sum(a, v, t0, t1):
    a(f"v_mov_b32 v{t0}, v{v}")
    a(f"v_mov_b32 v{t1}, v{v}")
    a("s_nop 1")
    a(f"v_permlane32_swap_b32 v{t0}, v{t1}")
    a("s_nop 1")
    a(f"v_add_f32 v{v}, v{t0}, v{t1}")
    a(f"v_mov_b32 v{t0}, v{v}")
    a(f"v_mov_b32 v{t1}, v{v}")
    a("s_nop 1")
    a(f"v_permlane16_swap_b32 v{t0}, v{t1}")
    a("s_nop 1")
    a(f"v_add_f32 v{v}, v{t0}, v{t1}")


def pk(a, op, d, s0, s1, s2=None, mods=""):
    ops = f"{vr(d,2)}, {vr(s0,2)}, {vr(s1,2)}" + (f", {vr(s2,2)}" if s2 is not None else "")
    a(f"v_pk_{op}_f32 {ops} {mods}".rstrip())


def gen_kernel(a):
    kname = NAME + "_kernel"
    a.lines.append(f".globl {kname}")
    a.lines.append(".p2align 8")
    a.lines.append(f".type {kname},@function")
    a.label(kname)
    a("s_cmp_ge_u32 s2, 256")
    a("s_cbranch_scc1 L_end")
    stamp(a, 0, True)
    stamp(a, 1)
    a(f"s_load_dwordx16 {sr(S_X,16)}, s[0:1], 0")
    a(f"v_lshrrev_b32 v{V_T0}, 6, v0")
    a(f"v_and_b32 v{V_LANE}, 63, v0")
    a(f"v_readfirstlane_b32 s{S_WAVE}, v{V_T0}")
    a(f"s_and_b32 s{S_K}, s2, 7")
    a(f"s_lshr_b32 s{S_Q}, s2, 3")
    a(f"s_lshr_b32 s{S_B}, s{S_K}, 2")
    a(f"s_and_b32 s{S_NT}, s{S_K}, 3")
    a(f"s_lshl_b32 s{S_NT}, s{S_NT}, 1")
    a(f"s_lshr_b32 s{S_T0}, s{S_Q}, 4")
    a(f"s_add_u32 s{S_NT}, s{S_NT}, s{S_T0}")
    a(f"s_and_b32 s{S_MT}, s{S_Q}, 15")
    a(f"s_and_b32 s{S_WV}, s{S_WAVE}, 7")
    a(f"v_lshrrev_b32 v{V_T0}, 3, v{V_LANE}")
    a(f"v_and_b32 v{V_T1}, 7, v{V_LANE}")
    a(f"v_lshlrev_b32 v{V_T2}, 10, v{V_T0}")
    a(f"v_lshl_add_u32 v{V_T2}, v{V_T1}, 4, v{V_T2}")
    a(f"s_lshl_b32 s{S_T0}, s{S_WV}, 13")
    a(f"v_add_u32 v{V_XOFF}, s{S_T0}, v{V_T2}")
    a(f"s_and_b32 s{S_T1}, s{S_WV}, 1")
    a(f"s_add_u32 s{S_T2}, s{S_T1}, 32")
    a(f"s_lshl_b32 s{S_T3}, s{S_T2}, 13")
    a(f"v_add_u32 v{V_XOFF5}, s{S_T3}, v{V_T2}")
    a(f"s_mul_i32 s{S_XM05}, s{S_T2}, {XBLK}")
    a(f"s_mul_i32 s{S_XM0}, s{S_WV}, {XBLK}")
    a(f"v_bfe_u32 v{V_T2}, v{V_LANE}, 4, 1")
    a(f"s_lshl_b32 s{S_T1}, s{S_T1}, 1")
    a(f"v_or_b32 v{V_T2}, s{S_T1}, v{V_T2}")
    a(f"v_lshlrev_b32 v{V_T2}, 1, v{V_T2}")
    a(f"v_xor_b32 v{V_T2}, v{V_T2}, v{V_T1}")
    a(f"v_lshlrev_b32 v{V_WOFF}, 10, v{V_T0}")
    a(f"v_lshl_add_u32 v{V_WOFF}, v{V_T2}, 4, v{V_WOFF}")
    a(f"s_lshl_b32 s{S_T1}, s{S_NT}, 7")
    a(f"s_add_u32 s{S_T1}, s{S_T1}, s{S_T0}")
    a(f"v_add_u32 v{V_WOFF}, s{S_T1}, v{V_WOFF}")
    a(f"s_lshl_b32 s{S_WM0}, s{S_WV}, 10")
    a(f"s_add_u32 s{S_WM0}, s{S_WM0}, {WRING}")
    if ROTV == "k":
        a(f"s_mov_b32 s{S_ITW}, s{S_K}")
    elif ROTV == "0":
        a(f"s_mov_b32 s{S_ITW}, 0")
    elif ROTV == "b4":
        a(f"s_lshl_b32 s{S_ITW}, s{S_B}, 2")
    elif ROTV == "k1x4":
        a(f"s_and_b32 s{S_ITW}, s{S_K}, 1")
        a(f"s_lshl_b32 s{S_ITW}, s{S_ITW}, 2")
    elif ROTV == "k3x2":
        a(f"s_and_b32 s{S_ITW}, s{S_K}, 3")
        a(f"s_lshl_b32 s{S_ITW}, s{S_ITW}, 1")
    elif ROTV == "k3":
        a(f"s_and_b32 s{S_ITW}, s{S_K}, 3")
    elif ROTV == "k1":
        a(f"s_and_b32 s{S_ITW}, s{S_K}, 1")
    stage_regs(a)
    a(f"s_mul_i32 s{S_T0}, s{S_B}, 4096000")
    a(f"s_lshl_b32 s{S_T1}, s{S_MT}, 18")
    a(f"s_add_u32 s{S_T2}, s{S_T0}, s{S_T1}")
    a("s_waitcnt lgkmcnt(0)")
    a(f"s_add_u32 s{SRD_X}, s{S_X}, s{S_T2}")
    a(f"s_addc_u32 s{SRD_X+1}, s{S_X+1}, 0")
    a(f"s_and_b32 s{SRD_X+1}, s{SRD_X+1}, 0xffff")
    a(f"s_sub_u32 s{SRD_X+2}, 4096000, s{S_T1}")
    a(f"s_mov_b32 s{SRD_X+3}, 0x00020000")
    make_srd(a, SRD_W, S_W, W_BYTES)
    a(f"s_cmp_eq_u32 s{S_WAVE}, 8")
    a("s_cbranch_scc1 L_helper")
    stampp(a, 2)

    q = VQ()
    for j in range(5):
        x_dma(a, 0, j)
        q.issue(('X', 0, j))
    for t in range(NPRE):
        w_dma(a, t)
        q.issue(('W', t))
    a(f"s_lshr_b32 s{S_KH}, s{S_WAVE}, 2")
    a(f"s_and_b32 s{S_NQ}, s{S_WAVE}, 3")
    a(f"s_lshl_b32 s{S_GRP}, s{S_B}, 3")
    a(f"s_add_u32 s{S_GRP}, s{S_GRP}, s{S_NT}")
    a(f"s_mov_b32 s{S_IT}, 0")
    a(f"v_and_b32 v{V_T0}, 15, v{V_LANE}")
    a(f"v_lshrrev_b32 v{V_T1}, 4, v{V_LANE}")
    make_srd(a, SRD_P, S_BI, 1024)
    a(f"s_lshl_b32 s{S_T0}, s{S_NT}, 7")
    a(f"s_lshl_b32 s{S_T1}, s{S_NQ}, 5")
    a(f"s_add_u32 s{S_T1}, s{S_T0}, s{S_T1}")
    a(f"v_lshl_add_u32 v{V_T2}, v{V_T0}, 1, s{S_T1}")
    a(f"buffer_load_ushort v{V_BIAS}, v{V_T2}, {sr(SRD_P,4)}, 0 offen")
    q.issue('bias')
    a(f"v_lshl_add_u32 v{V_T2}, v{V_LANE}, 1, s{S_T0}")
    make_srd(a, SRD_P, S_GA, 1024)
    a(f"buffer_load_ushort v{V_GB}, v{V_T2}, {sr(SRD_P,4)}, 0 offen")
    q.issue('gamma')
    make_srd(a, SRD_P, S_BE, 1024)
    a(f"v_mov_b32 v{V_B}, v{V_T2}")
    make_srd(a, SRD_WS, S_WS, WS_BYTES)
    make_srd(a, SRD_OUT, S_OUT, OUT_BYTES)
    make_srd(a, SRD_DBG, S_DBG, 256)
    a(f"v_mul_u32_u24 v{V_AADDR}, {2*XBLK}, v{V_T0}")
    a(f"s_lshl_b32 s{S_T0}, s{S_KH}, 2")
    a(f"v_add_u32 v{V_T2}, s{S_T0}, v{V_T1}")
    a(f"v_lshl_add_u32 v{V_AADDR}, v{V_T2}, 4, v{V_AADDR}")
    a(f"v_bfe_u32 v{V_T2}, v{V_LANE}, 2, 2")
    a(f"v_lshl_add_u32 v{V_BADDR}, v{V_T1}, 3, v{V_T2}")
    a(f"v_lshlrev_b32 v{V_BADDR}, 7, v{V_BADDR}")
    a(f"v_bfe_u32 v{V_T2}, v{V_LANE}, 3, 2")
    a(f"v_xor_b32 v{V_T2}, s{S_NQ}, v{V_T2}")
    a(f"v_lshl_add_u32 v{V_BADDR}, v{V_T2}, 5, v{V_BADDR}")
    a(f"v_and_b32 v{V_T2}, 3, v{V_LANE}")
    a(f"v_lshl_add_u32 v{V_BADDR}, v{V_T2}, 3, v{V_BADDR}")
    a(f"s_lshl_b32 s{S_T1}, s{S_KH}, 12")
    a(f"s_add_u32 s{S_T1}, s{S_T1}, {WRING}")
    a(f"v_add_u32 v{V_BADDR}, s{S_T1}, v{V_BADDR}")
    a(f"v_add_u32 v{V_BADDR2}, {5*8192}, v{V_BADDR}")
    a(f"s_movk_i32 s{S_NVAL}, 128")
    a(f"s_sub_u32 s{S_T1}, 37, s{S_KH}")
    a(f"s_cmp_eq_u32 s{S_MT}, 15")
    a(f"s_cselect_b32 s{S_NVAL}, 73, s{S_NVAL}")
    a(f"s_cselect_b32 s{S_CNT}, s{S_T1}, 64")
    a(f"v_lshl_add_u32 v{V_T2}, v{V_T1}, 5, s{S_T0}")
    for v in range(16):
        f1, r = v >> 2, v & 3
        a(f"s_sub_i32 s{S_T1}, s{S_NVAL}, {8*r+f1}")
        a(f"v_cmp_gt_i32 {sr(MASKS[v],2)}, s{S_T1}, v{V_T2}")
    a(f"s_lshl_b32 s{S_T0}, s{S_NQ}, 13")
    a(f"s_lshl_b32 s{S_T1}, s{S_KH}, 12")
    a(f"s_add_u32 s{S_T2}, s{S_T0}, s{S_T1}")
    a(f"s_add_u32 s{S_T2}, s{S_T2}, {L_EX}")
    a(f"s_xor_b32 s{S_T3}, s{S_T2}, 4096")
    a(f"v_lshl_add_u32 v{V_T0}, v{V_LANE}, 4, s{S_T3}")
    a(f"v_lshl_add_u32 v{V_T1}, v{V_LANE}, 4, s{S_T2}")
    a(f"buffer_load_ushort v{V_LANE}, v{V_B}, {sr(SRD_P,4)}, 0 offen")
    q.issue('beta')
    for i in range(32):
        a(f"v_mov_b32 v{V_ACC+i}, 0")
    n = q.need([('X', 0, j) for j in range(5)] + [('W', t) for t in range(NPRE)])
    stampp(a, 3)
    a(f"s_waitcnt vmcnt({n})")
    if "--diagp2" in ARGS:
        a("s_barrier")
        stampp(a, 4)
    else:
        stampp(a, 4)
        a("s_barrier")
    b_read(a, 0, breg(0, 0))
    b_read(a, 1, breg(0, 1))
    for gi in range(GSW, 8):
        for (par, g) in A_SCHED[gi]:
            a_read(a, par, g, 0)

    def gsteps(G):
        s_, gi = G // 8, G % 8
        f0, cnt = GROUPS[gi]
        return [15 * s_ + f0 + k for k in range(cnt)]

    waits = {}
    for it in range(4):
        for gb in range(16):
            G = 16 * it + gb
            s_, gi = G // 8, G % 8
            need = [('W', t) for t in gsteps(G + 2) if t >= NPRE]
            if gi == GSW - 1:
                need += [('X', s_ + 1, j) for j in range(5)]
            n = q.need(need)
            if n is not None:
                waits[gb] = min(waits.get(gb, 99), n)
            xs = list(X_SCHED.get(gi, []))
            for t in gsteps(G):
                q.issue(('W', t + NSLOT))
                if xs:
                    q.issue(('X', s_ + xdelta(gi), xs.pop(0)))

    if DSPLIT == 2:
        a(f"s_and_b32 s{S_T0}, s{S_WAVE}, 1")
        a(f"s_cmp_eq_u32 s{S_T0}, 1")
        a("s_cselect_b64 vcc, -1, 0")
    elif STAG or DSPLIT:
        a(f"s_cmp_ge_u32 s{S_WAVE}, 4")
        a("s_cselect_b64 vcc, -1, 0")
    if AB_NOREAD or AB_NOA:
        for g in range(15):
            a_read(a, 0, g, 0)
        for g in range(2, 14):
            a_read(a, 1, g, 0)
        b_read(a, 2, breg(1, 0))
        b_read(a, 3, breg(1, 1))
    if AB_ZDMA:
        a(f"s_mov_b32 s{SRD_X+2}, 0")
        a(f"s_mov_b32 s{SRD_W+2}, 0")
    if "--prio" in ARGS:
        a(f"s_cmp_ge_u32 s{S_WAVE}, 4")
        a("s_cbranch_scc0 L_noprio")
        a("s_setprio 1")
        a.label("L_noprio")
    if "--prio0" in ARGS:
        a(f"s_cmp_lt_u32 s{S_WAVE}, 4")
        a("s_cbranch_scc0 L_noprio")
        a("s_setprio 1")
        a.label("L_noprio")
    INLOOP[0] = True
    stamp(a, 2)
    def emit_loop(variant):
        a.label(f"L_loop{variant}")
        for gb in range(16):
            srel, gi = gb // 8, gb % 8
            f0, cnt = GROUPS[gi]
            u0 = 15 * srel + f0
            ncnt = GROUPS[(gi + 1) % 8][1]
            a.c(f"group {gb}: stage_rel={srel} steps {f0}..{f0+cnt-1}")
            buf = (srel + (1 if gi >= GSW else 0)) & 1
            early = []
            late = []
            for k in range(ncnt):
                early.append(lambda k=k: b_read(a, u0 + cnt + k, breg(gb + 1, k)))
            for r in A_SCHED[gi]:
                early.append(lambda r=r: a_read(a, r[0], r[1], buf))
            xs = list(X_SCHED.get(gi, []))
            for k in range(cnt):
                def wd(k=k):
                    if u0 + k == 30 - NSLOT:
                        a(f"s_cmp_eq_u32 s{S_IT}, 3")
                        a(f"s_cselect_b32 s{SRD_W+2}, 0, s{SRD_W+2}")
                    w_dma(a, u0 + k + NSLOT)
                late.append(wd)
                if xs:
                    def xd(j=xs.pop(0), first=(k == 0)):
                        if gb == GSW and first:
                            a(f"s_cmp_eq_u32 s{S_IT}, 3")
                            a(f"s_cselect_b32 s{SRD_X+2}, 0, s{SRD_X+2}")
                        x_dma(a, srel + xdelta(gi), j)
                    late.append(xd)
            mf = [(f, k) for f in range(8) for k in range(cnt)]
            nm = len(mf)
            p1 = 1
            p2 = (P2 if cnt == 2 else P2 // 2) if STAG else 1
            ends = [i for i in range(nm - 1) if (i + 1) % cnt == 0]
            es = [i for i in ends if i <= max(p2, nm // 2 + 1)]
            ls = [i for i in ends if i >= p2]
            if not STAG:
                es = [i for i in ends]
                ls = [i for i in ends if i >= (1 if (DSPLIT or TWO) else 3)]
                if FRONT:
                    lim = FRONT if cnt == 2 else (FRONT + 1) // 2
                    es = [i for i in ends if i <= lim]
                    ls = [i for i in ends if 1 <= i <= lim]
            place = {}
            for idx, it_ in enumerate(early):
                place.setdefault(es[idx * len(es) // len(early)], []).append(it_)
            if TWO:
                half = len(ls) // 2
                lsel = ls[:half] if variant == 0 else ls[half:]
                for idx, it_ in enumerate(late):
                    place.setdefault(lsel[idx * len(lsel) // len(late)], []).append(it_)
            elif DSPLIT:
                half = len(ls) // 2
                la, lb = ls[:half], ls[half:]
                for idx, it_ in enumerate(late):
                    def ga(it_=it_, idx=idx):
                        a(f"s_cbranch_vccnz L_da_{gb}_{idx}")
                        it_()
                        a.label(f"L_da_{gb}_{idx}")
                    def gbb(it_=it_, idx=idx):
                        a(f"s_cbranch_vccz L_db_{gb}_{idx}")
                        it_()
                        a.label(f"L_db_{gb}_{idx}")
                    place.setdefault(la[idx * len(la) // len(late)], []).append(ga)
                    place.setdefault(lb[idx * len(lb) // len(late)], []).append(gbb)
            else:
                for idx, it_ in enumerate(late):
                    place.setdefault(ls[idx * len(ls) // len(late)], []).append(it_)
            if FINE:
                def flat(items):
                    out = []
                    for it_ in items:
                        n0 = len(a.lines)
                        it_()
                        out.append(a.lines[n0:])
                        del a.lines[n0:]
                    return out
                fe, fl = flat(early), flat(late)
                def split(groups):
                    out = []
                    for g_ in groups:
                        i_ = 0
                        while i_ < len(g_):
                            if "s_cmp_eq" in g_[i_]:
                                out.append(g_[i_:i_ + 2])
                                i_ += 2
                            else:
                                out.append([g_[i_]])
                                i_ += 1
                    return out
                fe, fl = split(fe), split(fl)
                seq = []
                ie = il = 0
                tot = len(fe) + len(fl)
                for z in range(tot):
                    take_e = ie < len(fe) and (il >= len(fl) or ie * len(fl) <= il * len(fe))
                    if take_e:
                        seq.append(fe[ie]); ie += 1
                    else:
                        seq.append(fl[il]); il += 1
                bp = BP if cnt == 2 else min(BP, 1)
                pl = {}
                if BP == 1 and not G0:
                    gaps = list(range(1, nm - 1 - FINE_TAIL))
                    for idx, ins in enumerate(seq):
                        pl.setdefault(gaps[idx * len(gaps) // len(seq)], []).extend(ins)
                else:
                    ge = list(range(0, nm - 1 - FINE_TAIL))
                    gl = list(range(bp, nm - 1 - FINE_TAIL))
                    pe = [ge[idx * len(ge) // len(fe)] for idx in range(len(fe))]
                    pll = [gl[(2 * idx + 1) * len(gl) // (2 * len(fl))] for idx in range(len(fl))]
                    if gi in GSEED:
                        rnd = random.Random(GSEED[gi] * 100 + gi)
                        pe = sorted(min(max(x + rnd.choice((-1, 0, 0, 1)), 0), nm - 2) for x in pe)
                        pll = sorted(min(max(x + rnd.choice((-1, 0, 0, 1)), bp), nm - 2) for x in pll)
                    for x, ins in zip(pe, fe):
                        pl.setdefault(x, []).extend(ins)
                    for x, ins in zip(pll, fl):
                        pl.setdefault(x, []).extend(ins)
                a(f"s_waitcnt vmcnt({waits[gb]}) lgkmcnt(0)")
                for i, (f, k) in enumerate(mf):
                    mfma(a, f, f0 + k, breg(gb, k))
                    if i == bp:
                        a("s_barrier")
                    a.lines.extend(pl.get(i, []))
                continue
            a(f"s_waitcnt vmcnt({40 if AB_NOWAIT else waits[gb]}) lgkmcnt(0)")
            for i, (f, k) in enumerate(mf):
                mfma(a, f, f0 + k, breg(gb, k))
                if STAG:
                    if i == p1:
                        a(f"s_cbranch_vccnz L_b1_{gb}")
                        a("s_barrier")
                        a.label(f"L_b1_{gb}")
                    if i == p2:
                        a(f"s_cbranch_vccz L_b2_{gb}")
                        a("s_barrier")
                        a.label(f"L_b2_{gb}")
                elif i == p1 and not AB_NOBAR:
                    a("s_barrier")
                for it_ in place.get(i, []):
                    it_()
        a(f"s_add_u32 s{S_ITW}, s{S_ITW}, 2")
        stage_regs(a)
        if DIAGI:
            for i in range(3):
                a(f"s_cmp_eq_u32 s{S_IT}, {i}")
                a(f"s_cbranch_scc0 L_st{i}_{variant}")
                a(f"s_memtime s[{STAMPS[2+i]}:{STAMPS[2+i]+1}]")
                a.label(f"L_st{i}_{variant}")
        a(f"s_add_u32 s{S_IT}, s{S_IT}, 1")
        a(f"s_cmp_lt_u32 s{S_IT}, 4")
        a(f"s_cbranch_scc1 L_loop{variant}")


    if TWO:
        if TWO == 2:
            a(f"s_and_b32 s{S_T0}, s{S_WAVE}, 1")
            a(f"s_cmp_eq_u32 s{S_T0}, 1")
        else:
            a(f"s_cmp_ge_u32 s{S_WAVE}, 4")
        a("s_cbranch_scc1 L_loop1")
        emit_loop(0)
        a("s_branch L_epi")
        emit_loop(1)
        a.label("L_epi")
    else:
        emit_loop(0)

    INLOOP[0] = False
    a.c("epilogue")
    stamp(a, 3)
    stampe(a, 1)
    P = V_E
    Y = V_E + 16
    T = V_E + 32
    VS, VM2 = V_O, V_O + 1
    U0, U1, U2, U3 = V_O + 2, V_O + 3, V_O + 4, V_O + 5
    U4, U5 = V_O + 6, V_O + 7
    ST = V_O + 8
    UM = V_O + 40
    OA0, OA1 = V_O + 42, V_O + 43
    a("s_waitcnt lgkmcnt(0)")
    a(f"s_cmp_eq_u32 s{S_KH}, 0")
    a("s_cbranch_scc0 L_ex1")
    for f in range(4):
        a(f"ds_write_b128 v{V_T0}, {vr(V_ACC+16+4*f,4)} offset:{f*1024}")
    a("s_branch L_ex2")
    a.label("L_ex1")
    for f in range(4):
        a(f"ds_write_b128 v{V_T0}, {vr(V_ACC+4*f,4)} offset:{f*1024}")
    a("s_nop 1")
    for v in range(16):
        a(f"v_mov_b32 v{V_ACC+v}, v{V_ACC+16+v}")
    a.label("L_ex2")
    a(f"v_lshl_or_b32 v{V_GB}, v{V_LANE}, 16, v{V_GB}")
    a(f"v_mbcnt_lo_u32_b32 v{V_LANE}, -1, 0")
    a(f"v_mbcnt_hi_u32_b32 v{V_LANE}, -1, v{V_LANE}")
    a(f"v_lshlrev_b32 v{V_BIAS}, 16, v{V_BIAS}")
    a(f"v_and_b32 v{U0}, 15, v{V_LANE}")
    a(f"s_lshl_b32 s{S_T0}, s{S_NQ}, 6")
    a(f"s_add_u32 s{S_T0}, s{S_T0}, {L_YT}")
    a(f"v_lshl_add_u32 v{U1}, v{U0}, 2, s{S_T0}")
    a(f"v_lshl_add_u32 v{U1}, v{V_T2}, 8, v{U1}")
    a(f"s_lshl_b32 s{S_T0}, s{S_KH}, 9")
    a(f"s_lshl_b32 s{S_T1}, s{S_NQ}, 7")
    a(f"s_add_u32 s{S_T0}, s{S_T0}, s{S_T1}")
    a(f"v_lshl_add_u32 v{U2}, v{U0}, 3, s{S_T0}")
    a(f"v_cvt_f32_u32 v{U3}, s{S_CNT}")
    a(f"v_rcp_f32 v{U3}, v{U3}")
    for v in range(0, 16, 2):
        pk(a, "add", Y + v, V_ACC + v, V_BIAS, mods="op_sel_hi:[1,0]")
    a("s_waitcnt vmcnt(0) lgkmcnt(0)")
    a("s_barrier")
    for f in range(4):
        a(f"ds_read_b128 {vr(P+4*f,4)}, v{V_T1} offset:{f*1024}")
    for f in range(4):
        a(f"s_waitcnt lgkmcnt({3-f})")
        pk(a, "add", Y + 4 * f, Y + 4 * f, P + 4 * f)
        pk(a, "add", Y + 4 * f + 2, Y + 4 * f + 2, P + 4 * f + 2)
    for v in range(16):
        a(f"v_cndmask_b32 v{T+v}, 0, v{Y+v}, {sr(MASKS[v],2)}")
    for st in (8, 4, 2):
        for v in range(0, st, 2):
            pk(a, "add", T + v, T + v, T + v + st)
    a(f"v_add_f32 v{VS}, v{T}, v{T+1}")
    cross4_sum(a, VS, U4, U5)
    a(f"v_mul_f32 v{UM}, v{VS}, v{U3}")
    for v in range(0, 16, 2):
        pk(a, "add", T + v, Y + v, UM, mods="op_sel_hi:[1,0] neg_lo:[0,1] neg_hi:[0,1]")
    for v in range(16):
        a(f"v_cndmask_b32 v{T+v}, 0, v{T+v}, {sr(MASKS[v],2)}")
    for v in range(0, 8, 2):
        pk(a, "mul", T + v, T + v, T + v)
    for v in range(0, 8, 2):
        pk(a, "fma", T + v, T + 8 + v, T + 8 + v, T + v)
    for st in (4, 2):
        for v in range(0, st, 2):
            pk(a, "add", T + v, T + v, T + v + st)
    a(f"v_add_f32 v{VM2}, v{T}, v{T+1}")
    cross4_sum(a, VM2, U4, U5)
    a(f"ds_write_b64 v{U2}, {vr(VS,2)} offset:{L_ST}")
    for v in range(16):
        f1, r = v >> 2, v & 3
        a(f"ds_write_b32 v{U1}, v{Y+v} offset:{(8*r+f1)*256}")
    a(f"v_lshrrev_b32 v{U0}, 3, v{V_LANE}")
    a(f"v_and_b32 v{U1}, 7, v{V_LANE}")
    a(f"s_lshl_b32 s{S_T0}, s{S_WAVE}, 12")
    a(f"s_add_u32 s{S_T0}, s{S_T0}, {L_YT}")
    a(f"v_lshl_add_u32 v{U2}, v{U0}, 8, s{S_T0}")
    a(f"v_lshl_add_u32 v{U2}, v{U1}, 5, v{U2}")
    a("s_waitcnt lgkmcnt(0)")
    a("s_barrier")
    Z = V_E
    a(f"s_cmp_lg_u32 s{S_WAVE}, 0")
    a("s_cbranch_scc1 L_notw0")
    stampe(a, 2)
    a(f"v_lshlrev_b32 v{U3}, 3, v{V_LANE}")
    a(f"ds_read_b64 {vr(T,2)}, v{U3} offset:{L_ST}")
    a(f"ds_read_b64 {vr(T+2,2)}, v{U3} offset:{L_ST+512}")
    a(f"s_lshl_b32 s{S_T0}, s{S_GRP}, 2")
    a(f"v_mov_b32 v{U5}, s{S_T0}")
    a(f"buffer_load_dword v{T+12}, v{U5}, {sr(SRD_DBG,4)}, 0 offen offset:{CNT_OFF} sc1")
    a(f"s_cmp_eq_u32 s{S_MT}, 15")
    a(f"s_cselect_b32 s{S_T0}, 37, 64")
    a(f"s_cselect_b32 s{S_T1}, 36, 64")
    a(f"v_cvt_f32_u32 v{T+4}, s{S_T0}")
    a(f"v_cvt_f32_u32 v{T+5}, s{S_T1}")
    a(f"v_cvt_f32_u32 v{T+6}, s{S_NVAL}")
    a(f"v_rcp_f32 v{T+7}, v{T+4}")
    a(f"v_rcp_f32 v{T+8}, v{T+5}")
    a(f"v_rcp_f32 v{T+9}, v{T+6}")
    a(f"s_lshl_b32 s{S_T0}, s{S_GRP}, 13")
    a(f"s_lshl_b32 s{S_T1}, s{S_MT}, 9")
    a(f"s_add_u32 s{S_T1}, s{S_T1}, s{S_T0}")
    a(f"v_add_u32 v{U4}, s{S_T0}, v{U3}")
    a(f"v_add_u32 v{U3}, s{S_T1}, v{U3}")
    a("s_waitcnt lgkmcnt(0)")
    a(f"v_add_f32 v{VS}, v{T}, v{T+2}")
    a(f"v_mul_f32 v{T+9}, v{VS}, v{T+9}")
    a(f"v_add_f32 v{VM2}, v{T+1}, v{T+3}")
    a(f"v_fma_f32 v{T+10}, v{T}, v{T+7}, -v{T+9}")
    a(f"v_fma_f32 v{T+11}, v{T+2}, v{T+8}, -v{T+9}")
    a(f"v_mul_f32 v{T+10}, v{T+10}, v{T+10}")
    a(f"v_mul_f32 v{T+11}, v{T+11}, v{T+11}")
    a(f"v_fmac_f32 v{VM2}, v{T+10}, v{T+4}")
    a(f"v_fmac_f32 v{VM2}, v{T+11}, v{T+5}")
    a(f"v_max_f32 v{VM2}, 0, v{VM2}")
    a(f"v_and_b32 v{VM2}, 0x7fffffff, v{VM2}")
    a(f"buffer_store_dwordx2 {vr(VS,2)}, v{U3}, {sr(SRD_WS,4)}, 0 offen sc1")
    a(f"s_mov_b32 s{S_T2}, 0")
    a(f"s_movk_i32 s{S_T3}, 4096")
    a("s_waitcnt vmcnt(1)")
    a.label("L_pollA")
    a(f"v_readfirstlane_b32 s{S_T1}, v{T+12}")
    a(f"s_add_u32 s{S_T2}, s{S_T2}, 1")
    a(f"s_cmp_ge_u32 s{S_T1}, 16")
    a("s_cbranch_scc1 L_pollB")
    a(f"buffer_load_dword v{T+12}, v{U5}, {sr(SRD_DBG,4)}, 0 offen offset:{CNT_OFF} sc1")
    a("s_waitcnt vmcnt(0)")
    a(f"s_cmp_lt_u32 s{S_T2}, 0x400000")
    a("s_cbranch_scc1 L_pollA")
    a.label("L_pollB")
    for i in range(16):
        so = "0" if i < 8 else f"s{S_T3}"
        a(f"buffer_load_dwordx2 {vr(ST+2*i,2)}, v{U4}, {sr(SRD_WS,4)}, {so} offen offset:{(i%8)*512} sc1")
    a("s_waitcnt vmcnt(0)")
    a(f"v_or3_b32 v{T}, v{ST+1}, v{ST+3}, v{ST+5}")
    a(f"v_or3_b32 v{T+1}, v{ST+7}, v{ST+9}, v{ST+11}")
    a(f"v_or3_b32 v{T+2}, v{ST+13}, v{ST+15}, v{ST+17}")
    a(f"v_or3_b32 v{T+3}, v{ST+19}, v{ST+21}, v{ST+23}")
    a(f"v_or3_b32 v{T+4}, v{ST+25}, v{ST+27}, v{ST+29}")
    a(f"v_or3_b32 v{T}, v{T}, v{T+1}, v{ST+31}")
    a(f"v_or3_b32 v{T+2}, v{T+2}, v{T+3}, v{T+4}")
    a(f"v_or_b32 v{T}, v{T}, v{T+2}")
    a(f"v_cmp_gt_i32 vcc, 0, v{T}")
    a(f"s_add_u32 s{S_T2}, s{S_T2}, 1")
    a("s_nop 3")
    a("s_cbranch_vccz L_got")
    a(f"s_cmp_lt_u32 s{S_T2}, 0x400000")
    a("s_cbranch_scc1 L_pollB")
    a.label("L_got")
    stamp(a, 4)
    stampe(a, 3)
    for i in range(8):
        pk(a, "add", T + 2 * i, ST + 2 * i, ST + 2 * i + 16)
    for st in (4, 2, 1):
        for v in range(st):
            pk(a, "add", T + 2 * v, T + 2 * v, T + 2 * (v + st))
    a(f"v_mul_f32 v{T}, {f2u(1.0/1993.0):#x}, v{T}")
    a(f"s_mov_b32 s{S_T0}, {f2u(1.0/128.0):#x}")
    a(f"s_mov_b32 s{S_T1}, {f2u(1.0/73.0):#x}")
    for i in range(16):
        a(f"v_fma_f32 v{ST+2*i}, v{ST+2*i}, s{S_T0 if i < 15 else S_T1}, -v{T}")
    for i in range(4):
        a(f"v_mul_f32 v{T+2+i}, v{ST+2*i}, v{ST+2*i}")
    for i in range(4, 15):
        a(f"v_fmac_f32 v{T+2+(i&3)}, v{ST+2*i}, v{ST+2*i}")
    a(f"v_mul_f32 v{ST+30}, v{ST+30}, v{ST+30}")
    a(f"v_add_f32 v{T+2}, v{T+2}, v{T+3}")
    a(f"v_add_f32 v{T+4}, v{T+4}, v{T+5}")
    a(f"v_fmac_f32 v{T+1}, 0x42920000, v{ST+30}")
    a(f"v_add_f32 v{T+2}, v{T+2}, v{T+4}")
    a(f"v_fmac_f32 v{T+1}, 0x43000000, v{T+2}")
    a(f"v_mov_b32 v{T+2}, {f2u(1e-5):#x}")
    a(f"v_fmac_f32 v{T+2}, {f2u(1.0/1993.0):#x}, v{T+1}")
    a(f"v_rsq_f32 v{T+2}, v{T+2}")
    a(f"v_lshlrev_b32 v{T+3}, 16, v{V_GB}")
    a(f"v_and_b32 v{T+4}, 0xffff0000, v{V_GB}")
    a(f"v_lshlrev_b32 v{U3}, 2, v{V_LANE}")
    a(f"v_mul_f32 v{T+2}, v{T+2}, v{T+3}")
    a(f"v_fma_f32 v{T+3}, -v{T}, v{T+2}, v{T+4}")
    a(f"ds_write_b32 v{U3}, v{T+2} offset:{L_SC}")
    a(f"ds_write_b32 v{U3}, v{T+3} offset:{L_SH}")
    a.label("L_notw0")
    for i2 in range(2):
        for half in range(2):
            a(f"ds_read_b128 {vr(Z+8*i2+4*half,4)}, v{U2} offset:{i2*2048+half*16}")
    a(f"s_lshl_b32 s{S_T0}, s{S_WAVE}, 4")
    a(f"s_lshl_b32 s{S_T1}, s{S_MT}, 7")
    a(f"s_add_u32 s{S_T0}, s{S_T0}, s{S_T1}")
    a(f"v_add_u32 v{U0}, s{S_T0}, v{U0}")
    a(f"v_add_u32 v{U3}, 8, v{U0}")
    a(f"s_mul_i32 s{S_T0}, s{S_B}, 2040832")
    a(f"s_lshl_b32 s{S_T1}, s{S_NT}, 7")
    a(f"s_add_u32 s{S_T0}, s{S_T0}, s{S_T1}")
    a(f"v_lshl_add_u32 v{U4}, v{U1}, 4, s{S_T0}")
    a(f"v_lshl_add_u32 v{OA0}, v{U0}, 10, v{U4}")
    a(f"v_lshl_add_u32 v{OA1}, v{U3}, 10, v{U4}")
    a(f"v_mov_b32 v{U4}, 0x7f000000")
    a(f"s_movk_i32 s{S_T0}, 1993")
    a(f"v_cmp_gt_u32 vcc, s{S_T0}, v{U0}")
    a(f"v_cmp_gt_u32 {sr(MASKS[0],2)}, s{S_T0}, v{U3}")
    a(f"v_lshlrev_b32 v{U1}, 5, v{U1}")
    a(f"v_cndmask_b32 v{OA0}, v{U4}, v{OA0}, vcc")
    a(f"v_cndmask_b32 v{OA1}, v{U4}, v{OA1}, {sr(MASKS[0],2)}")
    k0 = math.sqrt(2.0 / math.pi)
    c0 = -2.0 * k0 * math.log2(math.e)
    c1 = c0 * 0.044715
    C0, C1, ONE = V_O + 8, V_O + 10, V_O + 12
    a(f"v_mov_b32 v{C0}, {f2u(c0):#x}")
    a(f"v_mov_b32 v{C1}, {f2u(c1):#x}")
    a(f"v_mov_b32 v{ONE}, 1.0")
    a("s_waitcnt lgkmcnt(0)")
    a("s_barrier")
    SC, SH, E = V_E + 16, V_E + 24, V_E + 32
    a(f"ds_read_b128 {vr(SC,4)}, v{U1} offset:{L_SC}")
    a(f"ds_read_b128 {vr(SH,4)}, v{U1} offset:{L_SH}")
    a(f"ds_read_b128 {vr(SC+4,4)}, v{U1} offset:{L_SC+16}")
    a(f"ds_read_b128 {vr(SH+4,4)}, v{U1} offset:{L_SH+16}")
    a("s_waitcnt lgkmcnt(0)")
    for v in range(0, 16, 2):
        pk(a, "fma", Z + v, Z + v, SC + (v & 7), SH + (v & 7))
    for v in range(0, 16, 2):
        pk(a, "mul", E + v, Z + v, Z + v)
    for v in range(0, 16, 2):
        pk(a, "fma", E + v, E + v, C1, C0, mods="op_sel_hi:[1,0,0]")
    for v in range(0, 16, 2):
        pk(a, "mul", E + v, E + v, Z + v)
    for v in range(16):
        a(f"v_exp_f32 v{E+v}, v{E+v}")
    for v in range(0, 16, 2):
        pk(a, "add", E + v, E + v, ONE, mods="op_sel_hi:[1,0]")
    for v in range(16):
        a(f"v_rcp_f32 v{E+v}, v{E+v}")
    for v in range(0, 16, 2):
        pk(a, "mul", Z + v, Z + v, E + v)
    for v in range(8):
        a(f"v_cvt_pk_bf16_f32 v{E+v}, v{Z+2*v}, v{Z+2*v+1}")
    a(f"buffer_store_dwordx4 {vr(E,4)}, v{OA0}, {sr(SRD_OUT,4)}, 0 offen {OFLAG}")
    a(f"buffer_store_dwordx4 {vr(E+4,4)}, v{OA1}, {sr(SRD_OUT,4)}, 0 offen {OFLAG}")
    if DIAG:
        a(f"s_cmp_lg_u32 s{S_WAVE}, 0")
        a("s_cbranch_scc1 L_end")
        a("s_waitcnt vmcnt(0)")
        stampe(a, 4)
        stamp(a, 5, True)
        a("s_waitcnt lgkmcnt(0)")
        if DIAGH:
            a(f"v_mov_b32 v{V_T0}, 0")
            a(f"v_cmp_eq_u32 vcc, 0, v{V_LANE}")
            a("s_nop 1")
            a("s_and_saveexec_b64 s[74:75], vcc")
            a(f"v_mov_b32 v{V_T1}, s{STAMPS[5]}")
            a(f"buffer_atomic_umax v{V_T1}, v{V_T0}, {sr(SRD_DBG,4)}, 0 offen sc1")
            a(f"s_not_b32 s{S_T0}, s{STAMPS[0]}")
            a(f"v_mov_b32 v{V_T1}, s{S_T0}")
            a(f"buffer_atomic_umax v{V_T1}, v{V_T0}, {sr(SRD_DBG,4)}, 0 offen offset:4 sc1")
            a(f"v_mov_b32 v{V_T1}, s{STAMPS[0]}")
            a(f"buffer_atomic_umax v{V_T1}, v{V_T0}, {sr(SRD_DBG,4)}, 0 offen offset:8 sc1")
            for i in range(3):
                a(f"s_sub_u32 s{S_T0}, s{STAMPS[i+2]}, s{STAMPS[i+1]}")
                a(f"v_mov_b32 v{V_T1}, s{S_T0}")
                a(f"buffer_atomic_umax v{V_T1}, v{V_T0}, {sr(SRD_DBG,4)}, 0 offen offset:{12+4*i} sc1")
                a(f"buffer_atomic_add v{V_T1}, v{V_T0}, {sr(SRD_DBG,4)}, 0 offen offset:{24+4*i} sc1")
            a("s_mov_b64 exec, s[74:75]")
        a(f"s_lshl_b32 s{S_T0}, s2, 6")
        a(f"s_add_u32 s{S_T0}, s{S_T0}, 0x1000000")
        a(f"v_mov_b32 v{V_T0}, s{S_T0}")
        for i in range(6):
            a(f"v_mov_b32 v{V_T1}, s{STAMPS[i]}")
            a(f"buffer_store_dword v{V_T1}, v{V_T0}, {sr(SRD_WS,4)}, 0 offen offset:{4*i}")
    a.label("L_end")
    a("s_endpgm")

    a.label("L_helper")
    INLOOP[0] = False
    hq = VQ()
    V_WOFF_ODD = 12
    a(f"v_xor_b32 v{V_WOFF_ODD}, 64, v{V_WOFF}")

    def h_w(t):
        slot, sig = t % NSLOT, t % 15
        for w in range(8):
            a(f"s_mov_b32 m0, {WRING + slot*8192 + w*1024}")
            a(f"s_add_u32 s{S_T0}, s{S_SW}, {tap_of(sig)*524288 + w*8192}")
            a(f"buffer_load_dwordx4 v{V_WOFF if w % 2 == 0 else V_WOFF_ODD}, {sr(SRD_W,4)}, s{S_T0} offen lds")
            hq.issue(('W', t, w))

    def h_x(d0, d1):
        for d in range(d0, d1):
            a(f"s_mov_b32 m0, {XBUF + d*XBLK}")
            a(f"s_add_u32 s{S_T0}, s{S_SX+1}, {d*8192}")
            a(f"buffer_load_dwordx4 v{V_XOFF}, {sr(SRD_X,4)}, s{S_T0} offen lds")
            hq.issue(('X', d))

    def h_bar(u):
        f0, cnt = GROUPS[u + 2]
        need = [('W', f0 + k, w) for k in range(cnt) for w in range(8)]
        if u == GSW - 1:
            need += [('X', d) for d in range(34)]
        n = hq.need(need)
        if n is not None:
            a(f"s_waitcnt vmcnt({n})")
            hq.waited = max(hq.waited, len(hq.q) - 1 - n)
        if u < 0 or not AB_NOBAR:
            a("s_barrier")

    todo = [('w', t) for t in range(NPRE, NSLOT)] + [('x', 0), ('x', 9), ('x', 18), ('x', 26)]
    for _ in range(min(2, HPRE)):
        k, v = todo.pop(0)
        h_w(v)
    make_srd(a, SRD_WS, S_WS, WS_BYTES)
    make_srd(a, SRD_DBG, S_DBG, 256)
    make_srd(a, SRD_P, S_X, X_BYTES)
    a(f"s_lshl_b32 s{S_GRP}, s{S_B}, 3")
    a(f"s_add_u32 s{S_GRP}, s{S_GRP}, s{S_NT}")
    a(f"s_lshl_b32 s{S_T0}, s{S_GRP}, 13")
    a(f"s_lshl_b32 s{S_T1}, s{S_MT}, 9")
    a(f"s_add_u32 s{S_T1}, s{S_T1}, s{S_T0}")
    a(f"v_lshl_add_u32 v{V_T0}, v{V_LANE}, 3, s{S_T1}")
    a("v_mov_b32 v14, 0")
    a("v_mov_b32 v15, -1.0")
    a(f"buffer_store_dwordx2 v[14:15], v{V_T0}, {sr(SRD_WS,4)}, 0 offen sc1")
    hq.issue('clr')
    a(f"v_mov_b32 v{V_T2}, 0x7f000000")
    a(f"v_lshlrev_b32 v{V_T1}, 10, v{V_LANE}")
    a(f"v_add_u32 v{V_T1}, 384, v{V_T1}")
    a(f"s_mul_i32 s{S_T2}, s2, {32*1024}")
    a(f"s_mul_i32 s{S_T3}, s2, {30*1024}")
    a(f"v_cmp_gt_u32 vcc, 32, v{V_LANE}")
    a(f"v_cmp_gt_u32 s[72:73], 30, v{V_LANE}")
    a(f"s_lshl_b32 s{S_T1}, s{S_GRP}, 2")
    a(f"v_mov_b32 v18, s{S_T1}")
    a(f"v_cndmask_b32 v16, v{V_T2}, v{V_T1}, vcc")
    a(f"v_cndmask_b32 v17, v{V_T2}, v{V_T1}, s[72:73]")
    a("v_mov_b32 v19, 1")
    a(f"buffer_load_dword v20, v17, {sr(SRD_W,4)}, s{S_T3} offen")
    hq.issue('t0')
    a(f"buffer_load_dword v21, v16, {sr(SRD_P,4)}, s{S_T2} offen")
    hq.issue('t1')
    if L2PF:
        a(f"s_mul_i32 s{S_T1}, s{S_MT}, 60")
        a(f"v_add_u32 v22, s{S_T1}, v{V_LANE}")
        a("v_lshrrev_b32 v23, 6, v22")
        a("v_and_b32 v22, 63, v22")
        a("v_lshlrev_b32 v23, 19, v23")
        a("v_lshl_add_u32 v22, v22, 10, v23")
        a(f"s_lshl_b32 s{S_T1}, s{S_NT}, 7")
        a(f"v_add_u32 v22, s{S_T1}, v22")
        a(f"v_cmp_gt_u32 vcc, 60, v{V_LANE}")
        a("s_nop 1")
        a(f"v_cndmask_b32 v22, v{V_T2}, v22, vcc")
        a(f"buffer_load_dword v24, v22, {sr(SRD_W,4)}, s{S_SW+1} offen {PFFLAG}")
        hq.issue('p1')
        a(f"buffer_load_dword v25, v22, {sr(SRD_W,4)}, s{S_SW+2} offen {PFFLAG}")
        hq.issue('p2')
    def xlin():
        a(f"v_lshlrev_b32 v26, 7, v{V_LANE}")
        a(f"v_cmp_gt_u32 vcc, 58, v{V_LANE}")
        a(f"s_mul_i32 s{S_T2}, s2, {250*128}")
        a(f"v_cndmask_b32 v27, v{V_T2}, v26, vcc")
        for i in range(4):
            a(f"buffer_load_dword v{28+i}, v{26 if i < 3 else 27}, {sr(SRD_P,4)}, s{S_T2} offen")
            hq.issue(('xl', i))
            a(f"s_add_u32 s{S_T2}, s{S_T2}, 8192")

    def wlin():
        a(f"v_lshlrev_b32 v26, 7, v{V_LANE}")
        a(f"v_cmp_gt_u32 vcc, 48, v{V_LANE}")
        a(f"s_mul_i32 s{S_T2}, s2, {240*128}")
        a(f"v_cndmask_b32 v27, v{V_T2}, v26, vcc")
        for i in range(4):
            a(f"buffer_load_dword v{32+i}, v{26 if i < 3 else 27}, {sr(SRD_W,4)}, s{S_T2} offen")
            hq.issue(('wl', i))
            a(f"s_add_u32 s{S_T2}, s{S_T2}, 8192")

    if XLIN == 1:
        xlin()
    for _ in range(HPRE - 2):
        k, v = todo.pop(0)
        h_w(v)
    h_bar(-1)
    if XLIN == 2:
        xlin()
    u = 0
    xend = {0: 9, 9: 18, 18: 26, 26: 34}
    while todo:
        for _ in range(HPER):
            if todo:
                k, v = todo.pop(0)
                if k == 'w':
                    h_w(v)
                else:
                    h_x(v, xend[v])
        h_bar(u)
        u += 1
    assert hq.waited > hq.q.index('clr')
    if XLIN == 3:
        xlin()
    if WLIN:
        wlin()
    a(f"v_cmp_eq_u32 vcc, 0, v{V_LANE}")
    a("s_nop 1")
    a("s_and_saveexec_b64 s[74:75], vcc")
    a(f"buffer_atomic_add v19, v18, {sr(SRD_DBG,4)}, 0 offen offset:{CNT_OFF} sc1")
    hq.issue('atom')
    a("s_mov_b64 exec, s[74:75]")
    while u <= GSW:
        h_bar(u)
        u += 1
    if L2PF:
        while u < 8:
            a("s_barrier")
            u += 1
        a(f"s_mov_b32 s{S_T0}, 3")
        a.label("L_hloop")
        a(f"s_add_u32 s{S_T1}, s{S_T0}, s{S_K}")
        a(f"s_and_b32 s{S_T1}, s{S_T1}, 7")
        a(f"s_lshl_b32 s{S_T1}, s{S_T1}, 16")
        a(f"buffer_load_dword v24, v22, {sr(SRD_W,4)}, s{S_T1} offen {PFFLAG}")
        for _ in range(8):
            a("s_barrier")
        a(f"s_add_u32 s{S_T0}, s{S_T0}, 1")
        a(f"s_cmp_lt_u32 s{S_T0}, 8")
        a("s_cbranch_scc1 L_hloop")
    else:
        a(f"s_mov_b32 s{S_T0}, 0")
        a.label("L_hloop")
        if not AB_NOBAR:
            a("s_barrier")
        a(f"s_add_u32 s{S_T0}, s{S_T0}, 1")
        a(f"s_cmp_lt_u32 s{S_T0}, 16")
        a("s_cbranch_scc1 L_hloop")
    a("s_waitcnt vmcnt(0)")
    a("s_endpgm")


def kd(name, nvgpr):
    acc = (nvgpr + 3) // 4 * 4
    return f""".p2align 6
.amdhsa_kernel {name}
  .amdhsa_next_free_vgpr {nvgpr}
  .amdhsa_next_free_sgpr 102
  .amdhsa_accum_offset {acc}
  .amdhsa_group_segment_fixed_size 0
  .amdhsa_kernarg_size 64
  .amdhsa_user_sgpr_count 2
  .amdhsa_user_sgpr_kernarg_segment_ptr 1
  .amdhsa_system_sgpr_workgroup_id_x 1
  .amdhsa_float_denorm_mode_32 3
.end_amdhsa_kernel
"""


def main():
    args = [x for x in ARGS if not x.startswith("-")]
    out = args[0] if args else f"cdna_kernels/{NAME}.s"
    hdr = f"""; conv stem (HuBERT): conv1d(k=15,s=2) as implicit GEMM + per-channel norm over time + GELU, one fused kernel
; @launch grid=(256,1,1) block=(576,1,1) lds={LDS1}
.amdgcn_target "amdgcn-amd-amdhsa--gfx950"
.text
"""
    a = Asm()
    gen_kernel(a)
    txt = hdr + a.text() + '.section .rodata,"a"\n' + kd(NAME + "_kernel", NVGPR)
    open(out, "w").write(txt)


if __name__ == "__main__":
    main()
```
